```python
import torch

def _softmax(x, axis=-1):
    return torch.softmax(x, dim=axis)

def _gelu(x):
    return torch.nn.functional.gelu(x, approximate='tanh')

def _silu(x):
    return torch.nn.functional.silu(x)

def _sigmoid(x):
    return torch.sigmoid(x)

def _layernorm(x, axis=-1, eps=1e-05):
    m = x.mean(dim=axis, keepdim=True)
    v = x.var(dim=axis, keepdim=True, unbiased=False)
    return (x - m) / torch.sqrt(v + eps)

def _scatter_add(tgt, idx, src, axis=0):
    return tgt.clone().index_add_(axis, idx, src)

def _segment_sum(src, seg, n):
    out = torch.zeros((n,) + src.shape[1:], dtype=src.dtype)
    return out.index_add_(0, seg, src)

def _pad(x, pw):
    flat = tuple((v for pair in reversed(pw) for v in pair))
    return torch.nn.functional.pad(x, flat)
kernel_name = 'adaLN_cond__spectral_fnet__geglu_ffn__prompt'

def setup_inputs():

    _w = lambda a: (lambda t: t.to(torch.bfloat16) if t.is_floating_point() else t)(torch.as_tensor(a))

    def _A_setup():
        B, S, D = (1, 2048, 512)
        ns = torch.arange(S)[:, None] * torch.arange(S)[None, :]
        nd = torch.arange(D)[:, None] * torch.arange(D)[None, :]
        Ws_re = torch.cos(-2.0 * torch.pi * ns / S).to(float)
        Ws_im = torch.sin(-2.0 * torch.pi * ns / S).to(float)
        Wd_re = torch.cos(-2.0 * torch.pi * nd / D).to(float)
        Wd_im = torch.sin(-2.0 * torch.pi * nd / D).to(float)
        return {'x': _w((lambda *s: torch.randn(*s, dtype=torch.bfloat16) * 0.05)(B, S, D)), 'dft_seq_re': _w(Ws_re), 'dft_seq_im': _w(Ws_im), 'dft_hid_re': _w(Wd_re), 'dft_hid_im': _w(Wd_im)}
    _A_in = _A_setup()

    def _B_setup():
        B, S, D, F = (1, 2048, 512, 1792)
        return {'x': _w((lambda *s: torch.randn(*s, dtype=torch.bfloat16) * 0.05)(B, S, D)), 'w_gate': _w((lambda *s: torch.randn(*s, dtype=torch.bfloat16) * 0.4)(D, F)), 'w_up': _w((lambda *s: torch.randn(*s, dtype=torch.bfloat16) * 0.4)(D, F)), 'w_down': _w((lambda *s: torch.randn(*s, dtype=torch.bfloat16) * 0.4)(F, D))}
    _B_in = _B_setup()
    return {'A_x': _A_in['x'], 'A_dft_seq_re': _A_in['dft_seq_re'], 'A_dft_seq_im': _A_in['dft_seq_im'], 'A_dft_hid_re': _A_in['dft_hid_re'], 'A_dft_hid_im': _A_in['dft_hid_im'], 'B_x': _B_in['x'], 'B_w_gate': _B_in['w_gate'], 'B_w_up': _B_in['w_up'], 'B_w_down': _B_in['w_down'], 'c': _w((lambda *s: torch.randn(*s, dtype=torch.bfloat16) * 0.2)(1, 512) * 8.0), 'w_mod': _w((lambda *s: torch.randn(*s, dtype=torch.bfloat16) * 0.2)(512, 6 * 512) * 512 ** (-0.5) * 8.0)}

def reference(A_x, A_dft_seq_re, A_dft_seq_im, A_dft_hid_re, A_dft_hid_im, B_x, B_w_gate, B_w_up, B_w_down, c, w_mod):

    def _A_ref(x, dft_seq_re, dft_seq_im, dft_hid_re, dft_hid_im):
        a = torch.einsum('bsd,ed->bse', x, dft_hid_re)
        b = torch.einsum('bsd,ed->bse', x, dft_hid_im)
        y = torch.einsum('ts,bse->bte', dft_seq_re, a) - torch.einsum('ts,bse->bte', dft_seq_im, b)
        return y

    def _B_ref(x, w_gate, w_up, w_down):
        return _gelu(x @ w_gate) * (x @ w_up) @ w_down
    x = A_x
    mod = (_silu(c) @ w_mod).reshape(c.shape[0], 6, 1, -1)
    sa, ca, ga, sb, cb, gb = (mod[:, 0].clone(), mod[:, 1].clone(), mod[:, 2].clone(), mod[:, 3].clone(), mod[:, 4].clone(), mod[:, 5].clone())
    h = _layernorm(x, axis=-1) * (1 + ca) + sa
    x = x + ga * _A_ref(h, A_dft_seq_re, A_dft_seq_im, A_dft_hid_re, A_dft_hid_im)
    h = _layernorm(x, axis=-1) * (1 + cb) + sb
    x = x + gb * _B_ref(h, B_w_gate, B_w_up, B_w_down)
    return x
```

```python
import re

def v(i, n=1): return f"v{i}" if n == 1 else f"v[{i}:{i+n-1}]"
def s(i, n=1): return f"s{i}" if n == 1 else f"s[{i}:{i+n-1}]"
def a(i, n=1): return f"a{i}" if n == 1 else f"a[{i}:{i+n-1}]"

TRANS = ("v_exp_f32", "v_log_f32", "v_rcp_f32", "v_rsq_f32", "v_sqrt_f32", "v_sin_f32", "v_cos_f32", "v_rcp_iflag_f32")
_reg_re = re.compile(r"^(-|abs\(|\|)?([vsa])(\d+|\[(\d+):(\d+)\])\)?\|?$")

def regs_of(op):
    op = op.strip()
    if op in ("vcc", "vcc_lo", "vcc_hi"): return {"vcc"}
    if op in ("exec", "exec_lo", "exec_hi"): return {"exec"}
    if op == "m0": return {"m0"}
    m = _reg_re.match(op)
    if not m: return set()
    k = m.group(2)
    if m.group(4) is not None: lo, hi = int(m.group(4)), int(m.group(5))
    else: lo = hi = int(m.group(3))
    return {f"{k}{i}" for i in range(lo, hi + 1)}

class Ins:
    def __init__(self, text):
        self.text = text
        t = text.split(";")[0].strip()
        parts = t.split(None, 1)
        self.mn = parts[0]
        rest = parts[1] if len(parts) > 1 else ""
        ops, cur, depth = [], "", 0
        for ch in rest:
            if ch in "[(": depth += 1
            if ch in "])": depth -= 1
            if ch == "," and depth == 0: ops.append(cur.strip()); cur = ""
            else: cur += ch
        if cur.strip(): ops.append(cur.strip())
        self.mods = ""
        if ops:
            last = ops[-1].split(None, 1)
            ops[-1] = last[0]
            if len(last) > 1: self.mods = last[1]
        self.ops = ops
        mn = self.mn
        self.is_mfma = mn.startswith("v_mfma")
        self.is_valu = mn.startswith("v_") and not self.is_mfma
        self.is_trans = any(mn.startswith(x) for x in TRANS)
        self.is_dot = mn.startswith("v_dot")
        self.is_ds = mn.startswith("ds_")
        self.is_vmem = mn.startswith(("buffer_", "global_", "flat_"))
        self.is_salu = mn.startswith("s_")
        self.is_dpp = "_dpp" in mn or "quad_perm" in self.mods or "row_" in self.mods
        self.is_sdwa = "_sdwa" in mn or ("op_sel:" in self.mods and not mn.startswith("v_pk") and not self.is_dot)
        self.is_perml = mn.startswith("v_permlane")
        self.is_rdlane = mn.startswith(("v_readfirstlane", "v_readlane"))
        self.lds_dma = self.is_vmem and (re.search(r"\blds\b", self.mods) is not None or "load_lds" in mn)
        R = [regs_of(o) for o in ops]
        U = lambda l: set().union(*l) if l else set()
        self.dst, self.src = set(), set()
        self.srcC = set(); self.srcAB = set(); self.wide_data = set()
        if self.is_mfma:
            self.dst = R[0]; self.srcAB = R[1] | R[2]; self.srcC = R[3] if len(R) > 3 else set(); self.src = self.srcAB | self.srcC
            self.passes = 8 if "32x32x16" in mn else 4
        elif self.is_valu:
            if self.is_perml or mn.startswith("v_swap"):
                self.dst = R[0] | R[1]; self.src = R[0] | R[1]
            elif re.match(r"v_(add|sub|subrev)_co_|v_addc_co|v_subb_co|v_mad_u64|v_div_scale", mn):
                self.dst = R[0] | R[1]; self.src = U(R[2:])
            else:
                self.dst = R[0]; self.src = U(R[1:])
                if mn.startswith(("v_fmac", "v_dot2c", "v_pk_fmac", "v_writelane", "v_mac")) or self.is_dpp or self.is_sdwa: self.src |= R[0]
                if mn.startswith("v_cndmask") and len(ops) == 3: self.src |= {"vcc"}
        elif self.is_ds:
            if mn.startswith(("ds_read", "ds_bpermute", "ds_permute", "ds_swizzle")) or "_rtn" in mn:
                self.dst = R[0]; self.src = U(R[1:])
                if "d16" in mn: self.src |= R[0]
            else: self.src = U(R)
        elif self.is_vmem:
            if self.lds_dma: self.src = U(R) | {"m0"}
            elif "_load" in mn:
                self.dst = R[0]; self.src = U(R[1:])
                if "d16" in mn: self.src |= R[0]
            elif "atomic" in mn:
                self.src = U(R)
                if "sc0" in self.mods: self.dst = R[0]
            else:
                self.src = U(R)
                if re.search(r"x[34]$", mn): self.wide_data = R[0] if mn.startswith("buffer") else R[1]
        elif self.is_salu:
            if mn.startswith(("s_cmp", "s_cbranch", "s_branch", "s_waitcnt", "s_nop", "s_barrier", "s_endpgm", "s_sleep", "s_setprio", "s_bitcmp")):
                self.src = U(R)
            else:
                self.dst = R[0] if R else set(); self.src = U(R[1:])
                if "saveexec" in mn: self.dst |= {"exec"}
    def states(self):
        if self.mn == "s_nop": return int(self.ops[0], 0) + 1
        return 1

def need(p, c):
    n = 0
    isv = lambda r: r[0] in "va" and r != "vcc"
    pv = {r for r in p.dst if isv(r)}
    ps = {r for r in p.dst if not isv(r)}
    if p.is_mfma:
        big = p.passes == 8
        if c.is_mfma:
            if pv & c.srcAB: n = max(n, 12 if big else 8)
            if pv & c.srcC:
                if not (c.srcC == pv and c.passes == p.passes): n = max(n, 10 if big else 6)
            elif pv & c.dst: n = max(n, 12 if big else 8)
        elif c.is_valu or c.is_ds or c.is_vmem:
            if pv & (c.src | c.dst): n = max(n, 12 if big else 8)
            if c.is_valu and (p.srcC & c.dst): n = max(n, 7 if big else 3)
    elif p.is_valu:
        if c.is_mfma and (pv & c.src): n = max(n, 3 if p.is_dot else 2)
        if p.is_trans and (c.is_valu and not c.is_trans or c.is_ds or c.is_vmem) and (pv & c.src): n = max(n, 1)
        if p.is_sdwa and c.is_valu and (pv & (c.src | c.dst)): n = max(n, 1)
        if p.is_dot and (c.is_valu or c.is_ds or c.is_vmem) and (pv & (c.src | c.dst)):
            same_acc = c.mn == p.mn and not (pv & (regs_of(c.ops[1]) | regs_of(c.ops[2])))
            if not same_acc: n = max(n, 3)
        if c.is_rdlane and (pv & c.src): n = max(n, 1)
        if c.is_dpp and c.is_valu and (pv & c.src): n = max(n, 2)
        if c.is_perml and (pv & c.src): n = max(n, 2)
        if ps:
            if c.is_valu and (ps & c.src): n = max(n, 4 if c.mn.startswith(("v_readlane", "v_writelane")) else 2)
            if c.is_vmem and (ps & c.src): n = max(n, 5)
            if c.is_salu and (ps & c.src): n = max(n, 1)
    elif p.is_salu:
        if "m0" in p.dst and (c.lds_dma or "addtid" in c.mn): n = max(n, 1)
    if p.wide_data and (p.wide_data & c.dst):
        n = max(n, 2 if (c.is_valu or c.is_mfma) else 1)
    return n

class Asm:
    def __init__(self):
        self.items = []
    def __call__(self, text):
        for line in text.strip().split("\n"):
            line = line.strip()
            if not line or line.startswith(";"): continue
            if line.endswith(":"): self.items.append(("l", line))
            elif line.startswith("."): self.items.append(("r", line))
            else: self.items.append(("i", Ins(line)))
    def raw(self, text): self.items.append(("r", text))
    def label(self, l): self.items.append(("l", l + ":"))
    def render(self):
        out, hist = [], []
        for kind, it in self.items:
            if kind == "i":
                req, dist = 0, 0
                for p in reversed(hist):
                    if dist >= 20: break
                    req = max(req, need(p, it) - dist)
                    dist += p.states()
                while req > 0:
                    k = min(req, 16)
                    nop = Ins(f"s_nop {k-1}")
                    out.append("    " + nop.text); hist.append(nop); req -= k
                out.append("    " + it.text); hist.append(it)
                if it.mn in ("s_endpgm", "s_branch"): hist = []
            else:
                out.append(it if kind == "l" else it)
        return "\n".join(out) + "\n"
```

```python
from asmlib import *
import struct
def fl(x): return "0x%08x" % struct.unpack("<I", struct.pack("<f", x))[0]

SLAB_OFF = 0
MOD_OFF  = 0x200000
WQ_OFF   = 0x400000
WQ_CHUNK = 688128
WQ_P2    = 458752
X1_OFF   = 0x1000000
PART_OFF = 0x2000000
WS_USED  = 0x4000000

def srd(A, d, base, nbytes, add=0):
    if add:
        A(f"s_add_u32 s{d}, s{base}, {hex(add)}")
        A(f"s_addc_u32 s{d+1}, s{base+1}, 0")
    else:
        A(f"s_mov_b32 s{d}, s{base}")
        A(f"s_mov_b32 s{d+1}, s{base+1}")
    A(f"s_mov_b32 s{d+2}, {hex(nbytes)}")
    A(f"s_mov_b32 s{d+3}, 0x20000")

def kern_head(name):
    return f".globl {name}\n.p2align 8\n.type {name},@function\n{name}:\n"

def kern_desc(name, vgpr, sgpr=102, accum=None):
    accum = accum or ((vgpr + 3) // 4 * 4)
    return f""".p2align 6
.amdhsa_kernel {name}
  .amdhsa_next_free_vgpr {vgpr}
  .amdhsa_next_free_sgpr {sgpr}
  .amdhsa_accum_offset {accum}
  .amdhsa_group_segment_fixed_size 0
  .amdhsa_kernarg_size 112
  .amdhsa_user_sgpr_count 2
  .amdhsa_user_sgpr_kernarg_segment_ptr 1
  .amdhsa_system_sgpr_workgroup_id_x 1
.end_amdhsa_kernel
"""

import os
STAMPS = os.environ.get("STAMPS", "0") == "1"
STAMP_OFF = 0x8000000
ST0 = 70
def stamp(A, k):
    if STAMPS: A(f"s_memrealtime s[{ST0+2*k}:{ST0+2*k+1}]")
def stamp_init(A, n):
    if STAMPS:
        for k in range(n): A(f"s_mov_b32 s{ST0+2*k}, 0")
        A("v_lshrrev_b32 v255, 6, v0" if False else "s_nop 0")
def stamp_flush(A, kern, n, wave_sgpr=None, tid="v0"):
    if not STAMPS: return
    A(f"s_memrealtime s[{ST0+2*(n-1)}:{ST0+2*(n-1)+1}]")
    A("s_mov_b64 exec, -1")
    srd(A, 96, 4, 0x1000000, STAMP_OFF + kern * 0x100000)
    A(f"v_lshrrev_b32 v1, 6, {tid}")
    A("v_lshlrev_b32 v1, 6, v1")
    A("s_lshl_b32 s94, s2, 10")
    A("s_getreg_b32 s95, hwreg(HW_REG_XCC_ID)")
    A("s_waitcnt lgkmcnt(0)")
    A("s_mov_b64 exec, 1")
    for k in range(n):
        A(f"v_mov_b32 v2, s{ST0+2*k}")
        A(f"buffer_store_dword v2, v1, s[96:99], s94 offen offset:{4*k}")
    A("v_mov_b32 v2, s95")
    A(f"buffer_store_dword v2, v1, s[96:99], s94 offen offset:60")
```

```python
from gen_common import *

K1_SLAB, K1_GEMV, K1_REL = 128, 48, 84
K1_GRID = K1_SLAB + K1_GEMV + K1_REL
K1_LDS = 64 * 320

def gen_k1():
    A = Asm()
    A(f"s_cmp_ge_u32 s2, {K1_GRID}")
    A("s_cbranch_scc1 K1_end")
    stamp_init(A, 4); stamp(A, 0)
    A("s_load_dwordx2 s[4:5], s[0:1], 104")
    A(f"s_cmp_ge_u32 s2, {K1_SLAB + K1_GEMV}")
    A("s_cbranch_scc1 K1_rel")
    A(f"s_cmp_ge_u32 s2, {K1_SLAB}")
    A("s_cbranch_scc1 K1_gemv")
    A("s_load_dwordx2 s[6:7], s[0:1], 0")
    A("s_and_b32 s16, s2, 31")
    A("s_lshr_b32 s17, s2, 5")
    A("s_lshl_b32 s18, s17, 1")
    for i in range(8):
        A(f"s_add_u32 s{20+i}, s18, {i}")
        A(f"s_and_b32 s{20+i}, s{20+i}, 7")
        A(f"s_lshl_b32 s{20+i}, s{20+i}, 7")
    A("v_lshrrev_b32 v1, 3, v0")
    A("v_and_b32 v2, 7, v0")
    A("v_lshlrev_b32 v2, 4, v2")
    A("v_lshl_add_u32 v3, v1, 15, v2")
    A("s_lshl_b32 s19, s16, 10")
    A("v_add_u32 v3, s19, v3")
    A("s_waitcnt lgkmcnt(0)")
    srd(A, 8, 6, 0x200000)
    D = 32
    for i in range(8):
        A(f"buffer_load_dwordx4 {v(D+4*i,4)}, v3, s[8:11], s{20+i} offen")
    srd(A, 12, 4, 0x200000, SLAB_OFF)
    A("v_mul_u32_u24 v4, 320, v1")
    A("v_add_u32 v4, v4, v2")
    A("v_and_b32 v5, 63, v0")
    A("v_lshrrev_b32 v6, 6, v0")
    A("v_and_b32 v7, 31, v5")
    A("v_lshrrev_b32 v8, 5, v5")
    A("v_and_b32 v9, 3, v6")
    A("v_lshrrev_b32 v10, 2, v6")
    A("v_cmp_eq_u32 vcc, 0, v7")
    A("v_cndmask_b32 v11, v7, 32, vcc")
    A("v_mov_b32 v12, 0.25" if False else f"v_mov_b32 v12, {fl(0.25)}")
    A("v_cndmask_b32 v12, v12, 0, vcc")
    A("v_cmp_eq_u32 vcc, 0, v10")
    A("v_cndmask_b32 v11, v11, v7, vcc")
    A("v_cndmask_b32 v12, v12, 0, vcc")
    A("v_cvt_f32_u32 v11, v11")
    A(f"v_mul_f32 v11, {fl(1/64)}, v11")
    A("v_lshlrev_b32 v13, 3, v8")
    A("v_cvt_f32_u32 v13, v13")
    A("v_fma_f32 v12, v11, v13, v12")
    F = 64
    T = 80
    for ks in range(4):
        for j in range(8):
            A(f"v_fmamk_f32 v{T+j}, v11, {fl(float(16*ks+j))}, v12")
        for j in range(8):
            A(f"v_cos_f32 v{T+j}, v{T+j}")
        for j in range(4):
            A(f"v_cvt_pk_bf16_f32 v{F+4*ks+j}, v{T+2*j}, v{T+2*j+1}")
    A("v_and_b32 v14, 15, v5")
    A("v_lshrrev_b32 v15, 2, v14")
    A("v_lshl_add_u32 v15, v8, 3, v15")
    A("v_mul_u32_u24 v15, 320, v15")
    A("v_bfe_u32 v16, v5, 4, 1")
    A("v_lshlrev_b32 v16, 2, v16")
    A("v_and_b32 v17, 1, v14")
    A("v_lshl_or_b32 v16, v17, 1, v16")
    A("v_bfe_u32 v17, v14, 1, 1")
    A("v_or_b32 v16, v16, v17")
    A("v_lshlrev_b32 v16, 3, v16")
    A("v_lshl_add_u32 v16, v9, 6, v16")
    A("v_add_u32 v15, v15, v16")
    A("v_lshl_add_u32 v18, v7, 1, v10")
    A("v_lshlrev_b32 v18, 15, v18")
    A("v_lshl_add_u32 v18, v9, 6, v18")
    A("v_lshl_add_u32 v18, v8, 4, v18")
    A("s_lshl_b32 s18, s17, 8")
    A("s_add_u32 s18, s18, s19")
    A("v_mov_b32 v20, 0\nv_mov_b32 v21, 0\nv_mov_b32 v22, 0\nv_mov_b32 v23, 0")
    A("s_mov_b32 s30, 0x3f803f80")
    for i in range(8):
        A(f"s_waitcnt vmcnt({7-i})")
        for j in range(4):
            r = D + 4*i + j
            A(f"v_dot2c_f32_bf16 v{20+(j&1)}, s30, v{r}")
            A(f"v_dot2c_f32_bf16 v{22+(j&1)}, v{r}, v{r}")
    stamp(A, 1)
    A("v_add_f32 v20, v20, v21")
    A("v_add_f32 v22, v22, v23")
    for m in ("quad_perm:[1,0,3,2]", "quad_perm:[2,3,0,1]", "row_half_mirror"):
        A(f"v_add_f32_dpp v20, v20, v20 {m} row_mask:0xf bank_mask:0xf")
        A(f"v_add_f32_dpp v22, v22, v22 {m} row_mask:0xf bank_mask:0xf")
    A(f"v_mul_f32 v20, {fl(1/512)}, v20")
    A(f"v_mul_f32 v22, {fl(1/512)}, v22")
    A("v_fma_f32 v22, -v20, v20, v22")
    A("v_max_f32 v22, 0, v22")
    A(f"v_add_f32 v22, {fl(1e-5)}, v22")
    A("v_rsq_f32 v22, v22")
    A("v_mul_f32 v21, v20, v22")
    A("s_mov_b32 s31, 0xffff0000")
    for i in range(2):
        for j in range(4):
            r = D + 4*i + j
            A(f"v_lshlrev_b32 v24, 16, v{r}")
            A(f"v_and_b32 v25, s31, v{r}")
            A("v_fma_f32 v24, v24, v22, -v21")
            A("v_fma_f32 v25, v25, v22, -v21")
            A(f"v_cvt_pk_bf16_f32 v{r}, v24, v25")
        A(f"ds_write_b128 v4, {v(D+4*i,4)} offset:{128*i}")
    A("s_waitcnt lgkmcnt(0)")
    A("s_barrier")
    stamp(A, 2)
    Af = 40
    for ks in range(4):
        for q in range(2):
            A(f"ds_read_b64_tr_b16 {v(Af+4*ks+2*q,2)}, v15 offset:{(16*ks+4*q)*320}")
    C = 96
    for ks in range(4):
        A(f"s_waitcnt lgkmcnt({6-2*ks})")
        A(f"v_mfma_f32_32x32x16_bf16 {v(C,16)}, {v(Af+4*ks,4)}, {v(F+4*ks,4)}, {'0' if ks==0 else v(C,16)}")
    for j in range(8):
        A(f"v_cvt_pk_bf16_f32 v{24+j}, v{C+2*j}, v{C+2*j+1}")
    A("buffer_store_dwordx4 v[24:27], v18, s[12:15], s18 offen")
    A("buffer_store_dwordx4 v[28:31], v18, s[12:15], s18 offen offset:32")
    if STAMPS: A("s_waitcnt vmcnt(0)")
    stamp_flush(A, 0, 4)
    A("s_endpgm")
    A.label("K1_gemv")
    A("s_load_dwordx4 s[16:19], s[0:1], 72")
    A(f"s_sub_u32 s3, s2, {K1_SLAB}")
    A("v_lshrrev_b32 v1, 3, v0")
    A("v_and_b32 v2, 7, v0")
    A("v_mul_u32_u24 v3, 6144, v1")
    A("v_lshl_add_u32 v3, v2, 4, v3")
    A("s_lshl_b32 s20, s3, 7")
    for i in range(1, 8):
        A(f"s_add_u32 s{20+i}, s{19+i}, {64*6144}")
    A("v_lshlrev_b32 v4, 1, v1")
    A("s_waitcnt lgkmcnt(0)")
    srd(A, 8, 18, 512*3072*2)
    srd(A, 12, 16, 1024)
    for i in range(8):
        A(f"buffer_load_ushort v{16+i}, v4, s[12:15], 0 offen offset:{128*i}")
    D = 32
    for i in range(8):
        A(f"buffer_load_dwordx4 {v(D+4*i,4)}, v3, s[8:11], s{20+i} offen")
    A("v_lshlrev_b32 v5, 8, v1")
    A("v_lshl_add_u32 v5, v2, 5, v5")
    A("v_and_b32 v6, 63, v0")
    A("v_lshrrev_b32 v7, 6, v0")
    A("v_lshlrev_b32 v8, 11, v7")
    A("v_lshl_add_u32 v8, v6, 2, v8")
    A("v_lshlrev_b32 v9, 2, v0")
    for j in range(8): A(f"v_mov_b32 v{64+j}, 0")
    A("s_waitcnt vmcnt(8)")
    for i in range(8):
        A(f"v_lshlrev_b32 v{16+i}, 16, v{16+i}")
        A(f"v_mul_f32 v{24+i}, {fl(-1.4426950408889634)}, v{16+i}")
    for i in range(8): A(f"v_exp_f32 v{24+i}, v{24+i}")
    for i in range(8): A(f"v_add_f32 v{24+i}, 1.0, v{24+i}")
    for i in range(8): A(f"v_rcp_f32 v{24+i}, v{24+i}")
    for i in range(8): A(f"v_mul_f32 v{16+i}, v{16+i}, v{24+i}")
    for i in range(8): A(f"v_cvt_pk_bf16_f32 v{16+i}, v{16+i}, 0")
    for i in range(8): A(f"v_lshlrev_b32 v{24+i}, 16, v{16+i}")
    for i in range(8):
        A(f"s_waitcnt vmcnt({7-i})")
        for j in range(4):
            A(f"v_dot2c_f32_bf16 v{64+2*j}, v{16+i}, v{D+4*i+j}")
            A(f"v_dot2c_f32_bf16 v{65+2*j}, v{24+i}, v{D+4*i+j}")
    stamp(A, 1)
    A("ds_write_b128 v5, v[64:67]")
    A("ds_write_b128 v5, v[68:71] offset:16")
    A("s_waitcnt lgkmcnt(0)")
    A("s_barrier")
    for i in range(8): A(f"ds_read_b32 v{16+i}, v8 offset:{256*i}")
    A("s_waitcnt lgkmcnt(0)")
    for i in range(4): A(f"v_add_f32 v{16+i}, v{16+i}, v{20+i}")
    A("v_add_f32 v16, v16, v17\nv_add_f32 v18, v18, v19\nv_add_f32 v16, v16, v18")
    A("ds_write_b32 v9, v16 offset:16384")
    A("s_waitcnt lgkmcnt(0)")
    A("s_barrier")
    A("v_cmp_gt_u32 vcc, 64, v0")
    A("s_and_saveexec_b64 s[30:31], vcc")
    A("s_cbranch_execz K1_end")
    for i in range(8): A(f"ds_read_b32 v{16+i}, v9 offset:{16384+256*i}")
    A("s_lshr_b32 s28, s3, 3")
    A("s_and_b32 s29, s3, 7")
    A("s_lshl_b32 s29, s29, 6")
    A("v_add_u32 v10, s29, v6")
    A("v_sub_u32 v11, 0x200, v10")
    A("v_and_b32 v11, 0xff, v11")
    A("v_cmp_gt_u32 vcc, 0x100, v10")
    A("v_cndmask_b32 v12, v11, v10, vcc")
    A("v_cndmask_b32 v13, 32, 0, vcc")
    A("v_lshrrev_b32 v14, 5, v12")
    A("v_and_b32 v12, 31, v12")
    A("v_lshl_add_u32 v12, v14, 6, v12")
    A("v_add_u32 v12, v12, v13")
    A("s_sub_u32 s32, s28, 2")
    A("s_cmp_lt_u32 s32, 3")
    A("s_cselect_b64 vcc, -1, 0")
    A("v_cndmask_b32 v10, v10, v12, vcc")
    A("v_lshlrev_b32 v10, 2, v10")
    A("s_lshl_b32 s33, s28, 11")
    A("s_cmp_eq_u32 s28, 1")
    A("s_cselect_b32 s34, 1.0, 0")
    A("s_cmp_eq_u32 s28, 4")
    A("s_cselect_b32 s34, 1.0, s34")
    srd(A, 12, 4, 6*2048, MOD_OFF)
    A("s_waitcnt lgkmcnt(0)")
    for i in range(4): A(f"v_add_f32 v{16+i}, v{16+i}, v{20+i}")
    A("v_add_f32 v16, v16, v17\nv_add_f32 v18, v18, v19\nv_add_f32 v16, v16, v18")
    A("v_cvt_pk_bf16_f32 v16, v16, 0")
    A("v_lshlrev_b32 v16, 16, v16")
    A("v_add_f32 v16, s34, v16")
    A("v_cvt_pk_bf16_f32 v16, v16, 0")
    A("v_lshlrev_b32 v16, 16, v16")
    A("buffer_store_dword v16, v10, s[12:15], s33 offen")
    if STAMPS: A("s_waitcnt vmcnt(0)")
    stamp_flush(A, 0, 4)
    A("s_endpgm")
    A.label("K1_rel")
    A("s_load_dwordx4 s[16:19], s[0:1], 48")
    A("s_load_dwordx2 s[6:7], s[0:1], 64")
    A("v_lshrrev_b32 v1, 6, v0")
    A("v_readfirstlane_b32 s3, v1")
    A("v_and_b32 v2, 63, v0")
    A("v_and_b32 v3, 31, v2")
    A("v_lshrrev_b32 v4, 5, v2")
    A("v_lshlrev_b32 v5, 4, v2")
    A(f"s_sub_u32 s36, s2, {K1_SLAB + K1_GEMV}")
    A("s_lshl_b32 s36, s36, 3")
    A("s_add_u32 s36, s36, s3")
    A("s_cmp_ge_u32 s36, 448")
    A("s_cbranch_scc1 K1_rel_d")
    A("s_cmp_ge_u32 s36, 224")
    A("s_cselect_b32 s37, 1, 0")
    A("s_mul_i32 s38, s37, 224")
    A("s_sub_u32 s38, s36, s38")
    A("s_lshr_b32 s39, s38, 5")
    A("s_and_b32 s40, s38, 31")
    A("s_lshr_b32 s41, s40, 2")
    A("s_lshl_b32 s41, s41, 5")
    A("s_and_b32 s42, s40, 1")
    A("s_lshl_b32 s42, s42, 4")
    A("s_add_u32 s41, s41, s42")
    A("v_lshl_add_u32 v6, v4, 3, s41")
    A("s_bitcmp1_b32 s40, 1")
    A("s_cbranch_scc1 K1_rel_mir")
    for r in range(8): A(f"s_mov_b32 s{20+r}, {r*3584}")
    A("v_mov_b32 v7, v6")
    A("s_branch K1_rel_gu2")
    A.label("K1_rel_mir")
    for r in range(8): A(f"s_mov_b32 s{20+r}, {(7-r)*3584}")
    A("v_sub_u32 v6, 505, v6")
    A("v_cmp_eq_u32 vcc, 505, v6")
    A("v_mov_b32 v7, 249")
    A("v_cndmask_b32 v7, v6, v7, vcc")
    A.label("K1_rel_gu2")
    A("s_movk_i32 s43, 3584")
    A("v_mul_lo_u32 v6, v6, s43")
    A("v_mul_lo_u32 v7, v7, s43")
    A("s_lshl_b32 s44, s39, 9")
    A("v_lshl_add_u32 v8, v3, 4, s44")
    A("v_add_u32 v6, v6, v8")
    A("v_add_u32 v7, v7, v8")
    A("s_lshl_b32 s45, s39, 16")
    A("s_lshl_b32 s46, s40, 1")
    A("s_add_u32 s46, s46, s37")
    A("s_lshl_b32 s46, s46, 10")
    A("s_add_u32 s28, s45, s46")
    for q in range(1, 8): A(f"s_add_u32 s{28+q}, s{27+q}, {WQ_CHUNK}")
    A("s_waitcnt lgkmcnt(0)")
    A("s_cmp_eq_u32 s37, 0")
    A("s_cselect_b32 s8, s16, s18")
    A("s_cselect_b32 s9, s17, s19")
    A("s_branch K1_rel_go")
    A.label("K1_rel_d")
    A("s_sub_u32 s36, s36, 448")
    A("s_and_b32 s37, s36, 7")
    A("s_lshr_b32 s38, s36, 4")
    A("s_bfe_u32 s39, s36, 0x10003")
    A("s_lshl_b32 s40, s38, 7")
    A("s_add_u32 s40, s40, s37")
    A("v_lshl_add_u32 v6, v4, 5, s40")
    A("v_lshlrev_b32 v6, 10, v6")
    A("s_lshl_b32 s44, s39, 9")
    A("v_lshl_add_u32 v8, v3, 4, s44")
    A("v_add_u32 v6, v6, v8")
    A("v_mov_b32 v7, v6")
    for r in range(8): A(f"s_mov_b32 s{20+r}, {(64*(r>>2) + 8*(r&3))*1024}")
    A(f"s_mul_i32 s45, s37, {WQ_CHUNK}")
    A(f"s_mul_i32 s46, s39, {4*28672}")
    A("s_add_u32 s45, s45, s46")
    A("s_lshl_b32 s46, s38, 11")
    A("s_add_u32 s45, s45, s46")
    for q in range(8): A(f"s_add_u32 s{28+q}, s45, {WQ_P2 + (q>>1)*28672 + (q&1)*1024}")
    A("s_waitcnt lgkmcnt(0)")
    A("s_mov_b32 s8, s6")
    A("s_mov_b32 s9, s7")
    A.label("K1_rel_go")
    A(f"s_mov_b32 s10, {512*1792*2}")
    A("s_mov_b32 s11, 0x20000")
    D = 16
    for r in range(8):
        A(f"buffer_load_dwordx4 {v(D+4*r,4)}, {'v7' if r==0 else 'v6'}, s[8:11], s{20+r} offen")
    srd(A, 12, 4, 8*WQ_CHUNK, WQ_OFF)
    A("s_mov_b32 s48, 0x05040100")
    A("s_mov_b32 s49, 0x07060302")
    O = 48
    for rp in range(4):
        A(f"s_waitcnt vmcnt({6-2*rp})")
        for c in range(4):
            A(f"v_perm_b32 v{O+8*c+rp}, v{D+8*rp+4+c}, v{D+8*rp+c}, s48")
            A(f"v_perm_b32 v{O+8*c+4+rp}, v{D+8*rp+4+c}, v{D+8*rp+c}, s49")
    stamp(A, 1)
    for q in range(8):
        A(f"buffer_store_dwordx4 {v(O+4*q,4)}, v5, s[12:15], s{28+q} offen")
    if STAMPS: A("s_waitcnt vmcnt(0)")
    stamp_flush(A, 0, 4)
    A.label("K1_end")
    A("s_endpgm")
    return A
```

```python
from gen_common import *

MATL = 65536
ZL = 131072
SHL = ZL + 8192
K2_LDS = SHL + 1024
K2_VGPR = 240

def gen_k2():
    A = Asm()
    A("s_cmp_ge_u32 s2, 256")
    A("s_cbranch_scc1 K2_end")
    stamp_init(A, 8); stamp(A, 0)
    A("s_load_dwordx2 s[4:5], s[0:1], 104")
    A("s_load_dwordx4 s[16:19], s[0:1], 24")
    A("s_load_dwordx2 s[6:7], s[0:1], 0")
    A("v_lshrrev_b32 v1, 6, v0")
    A("v_readfirstlane_b32 s3, v1")
    A("s_bfe_u32 s20, s2, 0x30003")
    A("s_and_b32 s21, s2, 7")
    A("s_lshl_b32 s21, s21, 2")
    A("s_lshr_b32 s22, s2, 6")
    A("s_add_u32 s21, s21, s22")
    A("v_and_b32 v2, 63, v0")
    A("v_and_b32 v3, 31, v2")
    A("v_lshrrev_b32 v4, 5, v2")
    A("v_lshlrev_b32 v5, 4, v2")
    A("v_lshlrev_b32 v6, 5, v2")
    A("s_and_b32 s22, s3, 1")
    A("s_lshl_b32 s22, s22, 3")
    X = 72
    for i in range(8):
        A(f"s_add_u32 s23, s22, {i}")
        A(f"v_xor_b32 v{X+i}, s23, v2")
        A(f"v_lshlrev_b32 v{X+i}, 4, v{X+i}")
    A("s_lshl_b32 s24, s21, 16")
    A("s_lshl_b32 s25, s3, 13")
    A("s_add_u32 s24, s24, s25")
    A("s_add_u32 s26, s24, 4096")
    A("s_waitcnt lgkmcnt(0)")
    srd(A, 8, 4, 0x200000 + 6*2048, 0)
    A(f"s_mov_b32 s27, {MOD_OFF + 2048}")
    CA = 64
    A(f"buffer_load_dwordx4 {v(CA,4)}, v6, s[8:11], s27 offen")
    A(f"buffer_load_dwordx4 {v(CA+4,4)}, v6, s[8:11], s27 offen offset:16")
    D = 32
    for i in range(8):
        A(f"buffer_load_dwordx4 {v(D+4*i,4)}, v5, s[8:11], {'s24' if i < 4 else 's26'} offen offset:{(i&3)*1024}")
    A("s_cmp_lt_u32 s3, 4")
    A("s_cselect_b32 s12, s16, s18")
    A("s_cselect_b32 s13, s17, s19")
    A("s_mov_b32 s14, 0x80000")
    A("s_mov_b32 s15, 0x20000")
    A("s_and_b32 s28, s3, 3")
    A("s_lshl_b32 s28, s28, 13")
    A("s_lshl_b32 s29, s20, 15")
    A("s_add_u32 s28, s28, s29")
    A("s_add_u32 s29, s28, 4096")
    A("s_lshl_b32 s30, s20, 3")
    A("s_add_u32 s30, s30, s3")
    A("s_cmp_eq_u32 s30, 4")
    A("s_cselect_b32 s32, s16, s12")
    A("s_cselect_b32 s33, s17, s13")
    A("s_cselect_b32 s31, 0x40000, s28")
    A("s_mov_b32 s34, 0x80000")
    A("s_mov_b32 s35, 0x20000")
    A(f"s_add_u32 m0, s25, {MATL}")
    A(f"buffer_load_dwordx4 v{X}, s[32:35], s31 offen lds")
    for i in range(1, 4):
        A(f"buffer_load_dwordx4 v{X+i}, s[12:15], s28 offen offset:{i*1024} lds")
    A(f"s_add_u32 m0, s25, {MATL + 4096}")
    for i in range(4, 8):
        A(f"buffer_load_dwordx4 v{X+i}, s[12:15], s29 offen offset:{(i&3)*1024} lds")
    for i in range(8):
        A(f"v_add_u32 v{X+i}, s25, v{X+i}")
    A("s_cmp_ge_u32 s3, 4")
    A("s_cbranch_scc1 K2_hi_pre")
    A("s_and_b32 s36, s3, 1")
    A("s_lshr_b32 s37, s3, 1")
    A("v_lshlrev_b32 v7, 6, v3")
    A("v_add_u32 v7, s21, v7")
    A("s_cmp_eq_u32 s36, 0")
    A("s_cbranch_scc1 K2_tok_done")
    A("v_add_u32 v8, 32, v7")
    A("v_sub_u32 v7, 0x800, v7")
    A("s_cmp_eq_u32 s21, 0")
    A("s_cselect_b64 vcc, -1, 0")
    A("v_cndmask_b32 v7, v7, v8, vcc")
    A.label("K2_tok_done")
    srd(A, 40, 6, 0x200000)
    XD = 160
    A("v_lshlrev_b32 v8, 10, v7")
    A("s_lshl_b32 s38, s20, 6")
    A("v_lshl_add_u32 v9, v4, 4, s38")
    A("s_cmp_eq_u32 s37, 0")
    A("s_cbranch_scc0 K2_xm")
    A("v_add_u32 v10, v8, v9")
    A(f"buffer_load_dwordx4 {v(XD,4)}, v10, s[40:43], 0 offen")
    A(f"buffer_load_dwordx4 {v(XD+4,4)}, v10, s[40:43], 0 offen offset:32")
    A("s_branch K2_xdone")
    A.label("K2_xm")
    A("v_sub_u32 v10, 976, v9")
    A("v_add_u32 v10, v8, v10")
    A(f"buffer_load_dwordx4 {v(XD,4)}, v10, s[40:43], 0 offen offset:32")
    A(f"buffer_load_dwordx4 {v(XD+4,4)}, v10, s[40:43], 0 offen")
    A(f"buffer_load_ushort v{XD+9}, v10, s[40:43], 0 offen offset:16")
    A("v_sub_u32 v11, 0x400, v9")
    A("v_cmp_eq_u32 vcc, 0, v9")
    A("v_mov_b32 v12, 0x200")
    A("v_cndmask_b32 v11, v11, v12, vcc")
    A("v_add_u32 v11, v8, v11")
    A(f"buffer_load_ushort v{XD+8}, v11, s[40:43], 0 offen")
    A.label("K2_xdone")
    GA = 172
    A("s_lshl_b32 s39, s20, 8")
    A("s_lshl_b32 s44, s37, 7")
    A("s_add_u32 s39, s39, s44")
    A(f"s_add_u32 s39, s39, {MOD_OFF + 4096}")
    A("v_lshlrev_b32 v12, 5, v4")
    for q in range(2):
        for z in range(2):
            A(f"buffer_load_dwordx4 {v(GA+8*q+4*z,4)}, v12, s[8:11], s39 offen offset:{64*q+16*z}")
    A("v_lshlrev_b32 v13, 10, v4")
    A("v_lshl_add_u32 v13, v3, 4, v13")
    A("s_lshl_b32 s45, s21, 16")
    A("s_lshl_b32 s46, s20, 13")
    A("s_add_u32 s45, s45, s46")
    A("s_lshl_b32 s46, s37, 12")
    A("s_add_u32 s45, s45, s46")
    A("s_lshl_b32 s46, s36, 9")
    A("s_add_u32 s45, s45, s46")
    srd(A, 48, 4, 0x200000, X1_OFF)
    AB, BB = 80, 88
    A("v_and_b32 v14, 15, v3")
    A("v_lshlrev_b32 v15, 10, v3")
    A("s_lshl_b32 s46, s36, 15")
    A("v_add_u32 v15, s46, v15")
    A("v_and_b32 v16, 19, v3")
    A("v_bfe_u32 v17, v3, 2, 1")
    A("v_lshl_or_b32 v16, v17, 3, v16")
    A("v_bfe_u32 v17, v3, 3, 1")
    A("v_lshl_or_b32 v16, v17, 2, v16")
    A("v_and_b32 v17, 15, v16")
    A("v_lshlrev_b32 v18, 10, v16")
    A("s_lshl_b32 s46, s37, 15")
    A(f"s_add_u32 s46, s46, {MATL}")
    A("v_add_u32 v18, s46, v18")
    A("v_xor_b32 v14, v14, v4")
    A("v_xor_b32 v17, v17, v4")
    for b in range(8):
        A(f"v_xor_b32 v19, {2*b}, v14")
        A(f"v_lshl_add_u32 v{AB+b}, v19, 4, v15")
        A(f"v_xor_b32 v19, {2*b}, v17")
        A(f"v_lshl_add_u32 v{BB+b}, v19, 4, v18")
    M = 96; CT = 128; ST = 144
    A("v_cvt_f32_u32 v19, v7")
    A(f"v_mul_f32 v19, {fl(1/2048)}, v19")
    A("v_lshlrev_b32 v20, 2, v4")
    A("v_cvt_f32_u32 v20, v20")
    A("v_mul_f32 v20, v19, v20")
    for k in range(16):
        s2c = 16*(k >> 3) + 8*((k >> 2) & 1) + (k & 3)
        A(f"v_fmamk_f32 v{ST+k}, v19, {fl(float(s2c))}, v20")
    for k in range(16):
        A(f"v_cos_f32 v{CT+k}, v{ST+k}")
        A(f"v_sin_f32 v{ST+k}, v{ST+k}")
    for k in range(8):
        A(f"v_cvt_pk_bf16_f32 v{M+k}, v{CT+2*k}, v{CT+2*k+1}")
        A(f"v_cvt_pk_bf16_f32 v{M+16+k}, v{ST+2*k}, v{ST+2*k+1}")
    A("s_mov_b32 s52, 0x80008000")
    A("s_cmp_eq_u32 s36, 0")
    A("s_cselect_b32 s53, 0, s52")
    A("s_cselect_b32 s56, -1, 0")
    A("s_cselect_b32 s57, 0, -1")
    A("s_cmp_eq_u32 s37, 0")
    A("s_cselect_b32 s54, 0, s52")
    A("s_xor_b32 s55, s53, s54")
    A("s_xor_b32 s55, s55, s52")
    A("s_cmp_eq_u32 s21, 0")
    A("s_cbranch_scc1 K2_mspec")
    for k in range(8):
        A(f"v_xor_b32 v{M+8+k}, s53, v{M+16+k}")
        A(f"v_xor_b32 v{M+24+k}, s55, v{M+k}")
        A(f"v_xor_b32 v{M+16+k}, s54, v{M+16+k}")
    A("s_branch K2_stage")
    A.label("K2_mspec")
    for k in range(8):
        A(f"v_xor_b32 v{M+16+k}, s54, v{M+16+k}")
        A(f"v_and_b32 v{M+8+k}, s57, v{M+k}")
        A(f"v_and_b32 v{M+k}, s56, v{M+k}")
        A(f"v_and_b32 v{M+24+k}, s57, v{M+16+k}")
        A(f"v_and_b32 v{M+16+k}, s56, v{M+16+k}")
    A("s_branch K2_stage")
    A.label("K2_hi_pre")
    A("s_cmp_eq_u32 s21, 0")
    A("s_cbranch_scc0 K2_stage")
    SA = 96
    A("v_lshrrev_b32 v7, 5, v0")
    A("v_and_b32 v7, 7, v7")
    A("v_lshlrev_b32 v8, 8, v7")
    A(f"s_mov_b32 s39, {MOD_OFF}")
    for k in range(16):
        A(f"buffer_load_dwordx4 {v(SA+4*k,4)}, v8, s[8:11], s39 offen offset:{16*k}")
    A.label("K2_stage")
    A("s_mov_b32 s58, 0xffff0000")
    stamp(A, 1)
    A("s_waitcnt vmcnt(0)")
    stamp(A, 2)
    for i in range(8):
        for j in range(4):
            r = D + 4*i + j
            A(f"v_lshlrev_b32 v24, 16, v{r}")
            A(f"v_and_b32 v25, s58, v{r}")
            A(f"v_pk_mul_f32 v[24:25], v[24:25], {v(CA+2*j,2)}")
            A(f"v_cvt_pk_bf16_f32 v{r}, v24, v25")
        A(f"ds_write_b128 v{X+i}, {v(D+4*i,4)} offset:{i*1024}")
    A("s_waitcnt lgkmcnt(0)")
    A("s_barrier")
    stamp(A, 3)
    A("s_cmp_ge_u32 s3, 4")
    A("s_cbranch_scc1 K2_hi_mid")
    C = 192; FA = 208; FB = 224; DEP = 4
    def rd(ks):
        b, a_ = ks & 7, ks >> 3
        A(f"ds_read_b128 {v(FA+4*(ks%DEP),4)}, v{AB+b} offset:{a_*256}")
        A(f"ds_read_b128 {v(FB+4*(ks%DEP),4)}, v{BB+b} offset:{a_*256}")
    for ks in range(DEP - 1): rd(ks)
    for ks in range(32):
        if ks + DEP - 1 < 32: rd(ks + DEP - 1)
        out = min(DEP - 1, 31 - ks)
        A(f"s_waitcnt lgkmcnt({2*out})")
        A(f"v_mfma_f32_32x32x16_bf16 {v(C,16)}, {v(FA+4*(ks%DEP),4)}, {v(FB+4*(ks%DEP),4)}, {'0' if ks==0 else v(C,16)}")
    for k in range(8):
        A(f"v_cvt_pk_bf16_f32 v{24+k}, v{C+2*k}, v{C+2*k+1}")
    stamp(A, 4)
    A("s_lshl_b32 s46, s3, 11")
    A(f"s_add_u32 s46, s46, {ZL}")
    A("v_add_u32 v19, s46, v5")
    A("ds_write_b128 v19, v[24:27]")
    A("ds_write_b128 v19, v[28:31] offset:1024")
    A(f"v_add_u32 v20, {ZL}, v5")
    A("s_lshl_b32 s46, s20, 1")
    A("s_add_u32 s46, s46, s37")
    A("s_cmp_eq_u32 s46, 1")
    A("s_cselect_b32 s46, 4096, 0")
    A("v_cmp_eq_u32 vcc, 0, v3")
    A("v_mov_b32 v21, s46")
    A("v_cndmask_b32 v21, 0, v21, vcc")
    A("v_add_u32 v21, v21, v20")
    A("s_waitcnt lgkmcnt(0)")
    A("s_barrier")
    stamp(A, 5)
    ZF = 208
    for k in range(4): A(f"ds_read_b128 {v(ZF+4*k,4)}, v21 offset:{1024*k}")
    for k in range(4): A(f"ds_read_b128 {v(ZF+16+4*k,4)}, v20 offset:{4096+1024*k}")
    for k in range(4):
        A(f"s_waitcnt lgkmcnt({7-k})")
        A(f"v_mfma_f32_32x32x16_bf16 {v(C,16)}, {v(ZF+4*k,4)}, {v(M+4*k,4)}, {'0' if k==0 else v(C,16)}")
    A("s_waitcnt lgkmcnt(0)")
    A("s_cmp_eq_u32 s20, 0")
    A("s_cbranch_scc0 K2_nz")
    A("s_mov_b32 exec_lo, 1")
    A("s_mov_b32 exec_hi, 1")
    for k in range(16): A(f"v_mov_b32 v{ZF+16+k}, 0")
    A("s_mov_b64 exec, -1")
    A("s_nop 1")
    A.label("K2_nz")
    for k in range(4, 8):
        A(f"v_mfma_f32_32x32x16_bf16 {v(C,16)}, {v(ZF+4*k,4)}, {v(M+4*k,4)}, {v(C,16)}")
    XU = 32
    A("s_cmp_eq_u32 s37, 0")
    A("s_cbranch_scc0 K2_xum")
    for k in range(8):
        A(f"v_lshlrev_b32 v{XU+2*k}, 16, v{XD+k}")
        A(f"v_and_b32 v{XU+2*k+1}, s58, v{XD+k}")
    A("s_branch K2_xud")
    A.label("K2_xum")
    for q in range(2):
        A(f"v_lshlrev_b32 v{XU+8*q}, 16, v{XD+8+q}")
        for k in range(1, 8):
            el = 8 - k
            r = XD + 4*q + (el >> 1)
            if el & 1: A(f"v_and_b32 v{XU+8*q+k}, s58, v{r}")
            else: A(f"v_lshlrev_b32 v{XU+8*q+k}, 16, v{r}")
    A.label("K2_xud")
    A("s_nop 7")
    A("s_or_b32 s46, s21, s36")
    A("s_cmp_eq_u32 s46, 0")
    A("s_cbranch_scc0 K2_nosh")
    A("s_lshl_b32 s46, s37, 7")
    A(f"s_add_u32 s46, s46, {SHL}")
    A("v_lshl_add_u32 v19, v4, 5, s46")
    SH = 96
    for p in range(4):
        for q in range(2):
            for z in range(2):
                A(f"ds_read_b128 {v(SH+16*p+8*q+4*z,4)}, v19 offset:{256*p+64*q+16*z}")
    A("s_waitcnt lgkmcnt(0)")
    A("s_mov_b32 exec_lo, 1")
    A("s_mov_b32 exec_hi, 1")
    for k in range(16):
        A(f"v_add_f32 v{SH+k}, v{SH+k}, v{SH+16+k}")
        A(f"v_add_f32 v{SH+32+k}, v{SH+32+k}, v{SH+48+k}")
        A(f"v_add_f32 v{SH+k}, v{SH+k}, v{SH+32+k}")
        A(f"v_fmamk_f32 v{C+k}, v{SH+k}, {fl(2048.0)}, v{C+k}")
    A("s_mov_b64 exec, -1")
    A.label("K2_nosh")
    for k in range(16):
        A(f"v_fmac_f32 v{XU+k}, v{GA+k}, v{C+k}")
    for k in range(8):
        A(f"v_cvt_pk_bf16_f32 v{24+k}, v{XU+2*k}, v{XU+2*k+1}")
    A("buffer_store_dwordx4 v[24:27], v13, s[48:51], s45 offen")
    A("buffer_store_dwordx4 v[28:31], v13, s[48:51], s45 offen offset:2048")
    stamp(A, 6)
    if STAMPS: A("s_waitcnt vmcnt(0)")
    stamp_flush(A, 1, 8)
    A("s_endpgm")
    A.label("K2_hi_mid")
    A("s_cmp_eq_u32 s21, 0")
    A("s_cbranch_scc0 K2_hi_bar")
    A("s_lshl_b32 s46, s20, 5")
    A("v_add_u32 v9, s46, v3")
    A("v_cvt_f32_u32 v10, v9")
    A(f"v_mul_f32 v10, {fl(1/512)}, v10")
    A("v_lshlrev_b32 v11, 6, v7")
    A("v_cvt_f32_u32 v11, v11")
    A("v_mul_f32 v11, v10, v11")
    A("v_mov_b32 v12, 0\nv_mov_b32 v13, 0")
    for k0 in range(0, 64, 8):
        for k in range(8): A(f"v_fmamk_f32 v{24+k}, v10, {fl(float(k0+k))}, v11")
        for k in range(8): A(f"v_cos_f32 v{24+k}, v{24+k}")
        for k in range(8): A(f"v_fmac_f32 v{12+(k&1)}, v{24+k}, v{SA+k0+k}")
    A("v_add_f32 v14, v12, v13")
    A("v_sub_f32 v15, v12, v13")
    A("v_cmp_eq_u32 vcc, 0, v9")
    A("v_cndmask_b32 v15, v14, v15, vcc")
    A("v_permlane32_swap_b32 v14, v15")
    A("v_add_f32 v14, v14, v15")
    A("s_lshl_b32 s46, s3, 8")
    A(f"s_add_u32 s46, s46, {SHL - 1024}")
    A("v_lshl_add_u32 v16, v2, 2, s46")
    A("ds_write_b32 v16, v14")
    A("s_waitcnt lgkmcnt(0)")
    A.label("K2_hi_bar")
    stamp(A, 4)
    A("s_barrier")
    stamp_flush(A, 1, 8)
    A.label("K2_end")
    A("s_endpgm")
    return A
```

```python
from gen_common import *
import math

ACTL = 65536
STATL = ACTL + 28672
K3_LDS = STATL + 4096
K4_LDS = 16384
CPX = int(os.environ.get("CPX", "4"))
RING = 40

def map_gj(A, sg, sj, t0, t1):
    lc = int(math.log2(CPX)); ns = 8 // CPX; lns = 3 - lc
    A(f"s_and_b32 s{t0}, s2, {ns-1}")
    A(f"s_lshl_b32 s{t0}, s{t0}, {lc}")
    A(f"s_lshr_b32 s{t1}, s2, 3")
    A(f"s_and_b32 s{sj}, s{t1}, {CPX-1}")
    A(f"s_add_u32 s{sj}, s{sj}, s{t0}")
    A(f"s_lshr_b32 s{t1}, s{t1}, {lc}")
    A(f"s_and_b32 s{t0}, s2, 7")
    A(f"s_lshr_b32 s{t0}, s{t0}, {lns}")
    A(f"s_lshl_b32 s{t0}, s{t0}, {5-lc}")
    A(f"s_add_u32 s{sg}, s{t0}, s{t1}")

def gen_k3():
    A = Asm()
    A("s_cmp_ge_u32 s2, 256")
    A("s_cbranch_scc1 K3_end")
    stamp_init(A, 10); stamp(A, 0)
    A("s_load_dwordx2 s[4:5], s[0:1], 104")
    A("v_lshrrev_b32 v1, 6, v0")
    A("v_readfirstlane_b32 s3, v1")
    map_gj(A, 21, 20, 22, 23)
    A("v_and_b32 v2, 63, v0")
    A("v_and_b32 v3, 31, v2")
    A("v_lshrrev_b32 v4, 5, v2")
    A("v_lshlrev_b32 v5, 4, v2")
    A("s_lshl_b32 s24, s21, 16")
    A("s_lshl_b32 s25, s3, 13")
    A("s_add_u32 s24, s24, s25")
    A("s_add_u32 s26, s24, 4096")
    A(f"s_mul_i32 s27, s20, {WQ_CHUNK}")
    A(f"s_mul_i32 s28, s3, 28672")
    A("s_add_u32 s28, s28, s27")
    A(f"s_add_u32 s28, s28, {WQ_P2}")
    A("s_lshl_b32 s29, s3, 16")
    A("s_add_u32 s27, s27, s29")
    A("s_waitcnt lgkmcnt(0)")
    srd(A, 8, 4, 0x200000, X1_OFF)
    srd(A, 12, 4, 8*WQ_CHUNK, WQ_OFF)
    D = 16
    for i in range(8):
        A(f"buffer_load_dwordx4 {v(D+4*i,4)}, v5, s[8:11], {'s24' if i < 4 else 's26'} offen offset:{(i&3)*1024}")
    A("s_lshl_b32 s29, s3, 8")
    A("s_add_u32 s6, s4, s29")
    A("s_addc_u32 s7, s5, 0")
    A(f"s_add_u32 s6, s6, {MOD_OFF + 3*2048}")
    A("s_addc_u32 s7, s7, 0")
    SB = [32, 48]; CB = [64 if not STAMPS else 64, 80]
    def sload(b):
        buf = b & 1
        A(f"s_load_dwordx8 s[{32+16*buf}:{32+16*buf+7}], s[6:7], {32*b}")
        A(f"s_load_dwordx8 s[{40+16*buf}:{40+16*buf+7}], s[6:7], {2048+32*b}")
    sload(0); sload(1)
    A("s_barrier")
    R = 96
    NF = 92
    def wload(i):
        if i < 64: so, k = "s27", i
        else: so, k = "s28", i - 64
        A(f"buffer_load_dwordx4 {v(R+4*(i%RING),4)}, v5, s[12:15], {so} offen offset:{(k&3)*1024}")
        if (k & 3) == 3: A(f"s_add_u32 {so}, {so}, 4096")
    A("s_cmp_eq_u32 s3, 7")
    A("s_cbranch_scc1 K3_w7load")
    for i in range(RING): wload(i)
    A(f"s_waitcnt vmcnt({RING})")
    A("s_branch K3_ln")
    A.label("K3_w7load")
    for i in range(64, NF): wload(i)
    A(f"s_waitcnt vmcnt({NF-64})")
    A.label("K3_ln")
    stamp(A, 1)
    A("v_mov_b32 v8, 0\nv_mov_b32 v9, 0\nv_mov_b32 v10, 0\nv_mov_b32 v11, 0")
    A("s_mov_b32 s30, 0x3f803f80")
    A("s_mov_b32 s31, 0xffff0000")
    for r in range(D, D + 32):
        A(f"v_dot2c_f32_bf16 v{8+2*(r&1)}, s30, v{r}")
        A(f"v_dot2c_f32_bf16 v{9+2*(r&1)}, v{r}, v{r}")
    A("v_pk_add_f32 v[8:9], v[8:9], v[10:11]")
    A("v_lshlrev_b32 v6, 3, v0")
    A(f"ds_write_b64 v6, v[8:9] offset:{STATL - 65536}" if False else f"v_add_u32 v6, {STATL}, v6")
    A("ds_write_b64 v6, v[8:9]")
    A("v_lshlrev_b32 v7, 3, v2")
    A(f"v_add_u32 v7, {STATL}, v7")
    A("s_waitcnt lgkmcnt(0)")
    A("s_barrier")
    T = 48
    for w in range(8): A(f"ds_read_b64 {v(T+2*w,2)}, v7 offset:{512*w}")
    A("v_add_u32 v6, s25, v5")
    A("s_waitcnt lgkmcnt(0)")
    for w in range(4): A(f"v_pk_add_f32 {v(T+2*w,2)}, {v(T+2*w,2)}, {v(T+8+2*w,2)}")
    for w in range(2): A(f"v_pk_add_f32 {v(T+2*w,2)}, {v(T+2*w,2)}, {v(T+4+2*w,2)}")
    A(f"v_pk_add_f32 v[8:9], {v(T,2)}, {v(T+2,2)}")
    A(f"v_mul_f32 v8, {fl(1/512)}, v8")
    A(f"v_mul_f32 v9, {fl(1/512)}, v9")
    A("v_fma_f32 v9, -v8, v8, v9")
    A("v_max_f32 v9, 0, v9")
    A(f"v_add_f32 v9, {fl(1e-5)}, v9")
    A("v_rsq_f32 v10, v9")
    A("v_mul_f32 v12, v8, v10")
    A("v_mov_b32 v11, v10")
    A("v_sub_f32 v12, 0, v12")
    A("v_mov_b32 v13, v12")
    for i in range(8):
        buf = i & 1
        for j in range(4):
            r = D + 4*i + j
            t = T + 2*j
            A(f"v_lshlrev_b32 v{t}, 16, v{r}")
            A(f"v_and_b32 v{t+1}, s31, v{r}")
            A(f"v_pk_fma_f32 {v(t,2)}, {v(t,2)}, v[10:11], v[12:13]")
            A(f"v_pk_mul_f32 {v(t,2)}, {v(t,2)}, {s(40+16*buf+2*j,2)}")
            A(f"v_pk_add_f32 {v(t,2)}, {v(t,2)}, {s(32+16*buf+2*j,2)}")
            A(f"v_cvt_pk_bf16_f32 v{r}, v{t}, v{t+1}")
        A(f"ds_write_b128 v6, {v(D+4*i,4)} offset:{i*1024}")
        if i + 1 < 8: A("s_waitcnt lgkmcnt(0)")
        if i + 2 < 8: sload(i + 2)
    A("v_lshlrev_b32 v7, 10, v4")
    A("v_lshl_add_u32 v7, v3, 4, v7")
    A(f"v_add_u32 v14, {ACTL}, v5")
    A("s_waitcnt lgkmcnt(0)")
    A("s_barrier")
    stamp(A, 2)
    A("s_cmp_eq_u32 s3, 7")
    A("s_cbranch_scc1 K3_p1done")
    C = 16; B = 80
    def brd(ks):
        A(f"ds_read_b128 {v(B+8*(ks&1),4)}, v7 offset:{ks*2048}")
        A(f"ds_read_b128 {v(B+8*(ks&1)+4,4)}, v7 offset:{ks*2048+512}")
    brd(0)
    for ks in range(32):
        if ks + 1 < 32: brd(ks + 1)
        issued = min(NF, RING + 2*ks)
        A(f"s_waitcnt vmcnt({issued - (2*ks+2)}) lgkmcnt({2 if ks+1 < 32 else 0})")
        for mat in range(2):
            for nt in range(2):
                c = C + 32*mat + 16*nt
                A(f"v_mfma_f32_32x32x16_bf16 {v(c,16)}, {v(R+4*((2*ks+mat)%RING),4)}, {v(B+8*(ks&1)+4*nt,4)}, {'0' if ks==0 else v(c,16)}")
            if 2*ks + mat + RING < NF: wload(2*ks + mat + RING)
    stamp(A, 3)
    c0 = -2.0 * math.sqrt(2.0 / math.pi) * math.log2(math.e)
    A(f"s_mov_b32 s32, {fl(c0 * 0.044715)}")
    A(f"v_mov_b32 v15, {fl(c0)}")
    A("s_lshl_b32 s29, s3, 12")
    A("v_add_u32 v6, s29, v14")
    for nt in range(2):
        for q in range(2):
            g0 = C + 16*nt + 8*q; u0 = g0 + 32; t0 = B
            for k in range(8): A(f"v_mul_f32 v{t0+k}, v{g0+k}, v{g0+k}")
            for k in range(8): A(f"v_fma_f32 v{t0+k}, v{t0+k}, s32, v15")
            for k in range(8): A(f"v_mul_f32 v{t0+k}, v{t0+k}, v{g0+k}")
            for k in range(8): A(f"v_exp_f32 v{t0+k}, v{t0+k}")
            for k in range(8): A(f"v_mul_f32 v{u0+k}, v{u0+k}, v{g0+k}")
            for k in range(8): A(f"v_add_f32 v{t0+k}, 1.0, v{t0+k}")
            for k in range(8): A(f"v_rcp_f32 v{t0+k}, v{t0+k}")
            for k in range(8): A(f"v_mul_f32 v{u0+k}, v{u0+k}, v{t0+k}")
            for k in range(4): A(f"v_cvt_pk_bf16_f32 v{g0+k}, v{u0+2*k}, v{u0+2*k+1}")
            A(f"ds_write_b128 v6, {v(g0,4)} offset:{(q*2+nt)*1024}")
    A("s_waitcnt lgkmcnt(0)")
    A.label("K3_p1done")
    stamp(A, 4)
    A("s_barrier")
    stamp(A, 5)
    def ard(kk):
        A(f"ds_read_b128 {v(B+8*(kk&1),4)}, v14 offset:{kk*2048}")
        A(f"ds_read_b128 {v(B+8*(kk&1)+4,4)}, v14 offset:{kk*2048+1024}")
    ard(0)
    srd(A, 8, 4, 0x1000000, PART_OFF)
    A("v_lshrrev_b32 v8, 3, v3")
    A("v_lshlrev_b32 v8, 16, v8")
    A("v_and_b32 v9, 7, v3")
    A("v_lshl_add_u32 v8, v9, 4, v8")
    A("v_lshl_add_u32 v8, v4, 9, v8")
    A("s_lshl_b32 s24, s21, 19")
    A("s_lshl_b32 s25, s20, 13")
    A("s_add_u32 s24, s24, s25")
    A("s_lshl_b32 s25, s3, 10")
    A("s_add_u32 s24, s24, s25")
    A("s_add_u32 s25, s24, 0x40000")
    for kk in range(14):
        if kk + 1 < 14: ard(kk + 1)
        A(f"s_waitcnt vmcnt({26 - 2*kk}) lgkmcnt({2 if kk+1 < 14 else 0})")
        for t in range(2):
            for nt in range(2):
                c = C + 32*t + 16*nt
                A(f"v_mfma_f32_32x32x16_bf16 {v(c,16)}, {v(R+4*((64+2*kk+t)%RING),4)}, {v(B+8*(kk&1)+4*nt,4)}, {'0' if kk==0 else v(c,16)}")
    stamp(A, 6)
    for nt in range(2):
        for k in range(16):
            A(f"v_cvt_pk_bf16_f32 v{96+16*nt+k}, v{C+16*nt+k}, v{C+32+16*nt+k}")
        for rq in range(4):
            A(f"buffer_store_dwordx4 {v(96+16*nt+4*rq,4)}, v8, s[8:11], {'s24' if nt==0 else 's25'} offen offset:{rq*128}")
    stamp(A, 7)
    if STAMPS: A("s_waitcnt vmcnt(0)")
    stamp_flush(A, 2, 10)
    A.label("K3_end")
    A("s_endpgm")
    return A

def gen_k4():
    A = Asm()
    A("s_cmp_ge_u32 s2, 256")
    A("s_cbranch_scc1 K4_end")
    stamp_init(A, 4); stamp(A, 0)
    A("s_load_dwordx2 s[4:5], s[0:1], 104")
    A("s_load_dwordx2 s[6:7], s[0:1], 88")
    A("s_lshr_b32 s21, s2, 3")
    A("s_and_b32 s20, s2, 7")
    A("v_lshlrev_b32 v1, 4, v0")
    A("s_lshl_b32 s22, s2, 16")
    for i in range(1, 8): A(f"s_add_u32 s{22+i}, s22, {8192*i}")
    A("v_and_b32 v2, 63, v0")
    A("v_lshrrev_b32 v3, 6, v0")
    A("s_waitcnt lgkmcnt(0)")
    srd(A, 8, 4, 0x1000000, PART_OFF)
    D = 32
    for i in range(8):
        A(f"buffer_load_dwordx4 {v(D+4*i,4)}, v1, s[8:11], s{22+i} offen")
    srd(A, 12, 4, 0x200000, X1_OFF)
    srd(A, 16, 4, 6*2048, MOD_OFF)
    A("s_lshl_b32 s30, s20, 3")
    A("v_add_u32 v4, s30, v3")
    A("v_sub_u32 v5, 63, v2")
    A("v_cmp_gt_u32 vcc, 32, v2")
    A("v_cndmask_b32 v5, v5, v2, vcc")
    A("v_cndmask_b32 v6, 4, 0, vcc")
    A("v_lshrrev_b32 v7, 2, v5")
    A("v_and_b32 v5, 3, v5")
    A("v_lshl_add_u32 v5, v7, 3, v5")
    A("v_add_u32 v5, v5, v6")
    A("v_lshlrev_b32 v5, 10, v5")
    A("v_lshl_add_u32 v5, v4, 4, v5")
    A("v_sub_u32 v8, 64, v2")
    A("v_and_b32 v8, 31, v8")
    A("v_lshrrev_b32 v7, 2, v8")
    A("v_and_b32 v8, 3, v8")
    A("v_lshl_add_u32 v8, v7, 3, v8")
    A("v_add_u32 v8, 4, v8")
    A("v_lshlrev_b32 v8, 10, v8")
    A("v_lshl_add_u32 v8, v4, 4, v8")
    A("s_lshl_b32 s31, s21, 16")
    A("buffer_load_dwordx4 v[12:15], v5, s[12:15], s31 offen")
    A("buffer_load_ushort v16, v8, s[12:15], s31 offen")
    A("v_lshlrev_b32 v9, 5, v2")
    A(f"s_mov_b32 s32, {5*2048}")
    A("buffer_load_dwordx4 v[20:23], v9, s[16:19], s32 offen")
    A("buffer_load_dwordx4 v[24:27], v9, s[16:19], s32 offen offset:16")
    A("v_mov_b32 v10, 0x01000c0c")
    A("v_mov_b32 v11, 0x05040c0c")
    A("v_cndmask_b32 v17, v10, v11, vcc")
    A("v_mov_b32 v10, 0x03020c0c")
    A("v_mov_b32 v11, 0x07060c0c")
    A("v_cndmask_b32 v18, v10, v11, vcc")
    A("v_and_b32 v10, 31, v4")
    A("v_lshlrev_b32 v10, 6, v10")
    A("v_add_u32 v10, s21, v10")
    A("s_cmp_lt_u32 s20, 4")
    A("s_cbranch_scc1 K4_tok")
    A("v_add_u32 v11, 32, v10")
    A("v_sub_u32 v10, 0x800, v10")
    A("s_cmp_eq_u32 s21, 0")
    A("s_cselect_b64 vcc, -1, 0")
    A("v_cndmask_b32 v10, v10, v11, vcc")
    A.label("K4_tok")
    A("v_lshlrev_b32 v10, 10, v10")
    A("v_lshl_add_u32 v10, v2, 4, v10")
    srd(A, 36, 6, 0x200000)
    A("v_and_b32 v28, 7, v0")
    A("v_lshlrev_b32 v28, 11, v28")
    A("v_bfe_u32 v29, v0, 3, 2")
    A("v_lshl_add_u32 v28, v29, 8, v28")
    A("v_bfe_u32 v29, v0, 5, 1")
    A("v_lshl_add_u32 v28, v29, 7, v28")
    A("v_bfe_u32 v29, v0, 6, 2")
    A("v_lshl_add_u32 v28, v29, 3, v28")
    A("v_bfe_u32 v29, v0, 8, 1")
    A("v_lshl_add_u32 v28, v29, 10, v28")
    A("v_lshlrev_b32 v29, 5, v0")
    A("s_mov_b32 s33, 0xffff0000")
    AC = 64
    for i in range(8):
        A(f"s_waitcnt vmcnt({11-i})")
        for j in range(4):
            r = D + 4*i + j
            if i == 0:
                A(f"v_lshlrev_b32 v{AC+2*j}, 16, v{r}")
                A(f"v_and_b32 v{AC+2*j+1}, s33, v{r}")
            else:
                A(f"v_lshlrev_b32 v30, 16, v{r}")
                A(f"v_and_b32 v31, s33, v{r}")
                A(f"v_pk_add_f32 {v(AC+2*j,2)}, {v(AC+2*j,2)}, v[30:31]")
    stamp(A, 1)
    for j in range(4): A(f"ds_write_b64 v28, {v(AC+2*j,2)} offset:{32*j}")
    A("s_waitcnt vmcnt(0) lgkmcnt(0)")
    A("s_barrier")
    A(f"ds_read_b128 {v(AC,4)}, v29")
    A(f"ds_read_b128 {v(AC+4,4)}, v29 offset:16")
    X = 32
    for k in range(8):
        mir = "v16" if k == 0 else f"v{12 + ((8-k) >> 1)}"
        A(f"v_perm_b32 v{X+k}, v{12 + (k >> 1)}, {mir}, {'v17' if k % 2 == 0 else 'v18'}")
    A("s_waitcnt lgkmcnt(0)")
    for k in range(8): A(f"v_fmac_f32 v{X+k}, v{20+k}, v{AC+k}")
    for k in range(4): A(f"v_cvt_pk_bf16_f32 v{40+k}, v{X+2*k}, v{X+2*k+1}")
    A("buffer_store_dwordx4 v[40:43], v10, s[36:39], 0 offen")
    stamp(A, 2)
    if STAMPS: A("s_waitcnt vmcnt(0)")
    stamp_flush(A, 3, 4)
    A.label("K4_end")
    A("s_endpgm")
    return A
```

```python
import sys
from gen_common import *
from gen_k1 import *
REF = open("adaLN_cond__spectral_fnet__geglu_ffn__prompt.s.ref").read().split("\n")
hdr = [l for l in REF if l.startswith(";") and "@launch" not in l and "Override" not in l and "grid=ceil" not in l]
kernels = [("k1_kernel", gen_k1(), K1_GRID, 512, K1_LDS, 112)]
try:
    from gen_k2 import *
    kernels.append(("k2_kernel", gen_k2(), 256, 512, K2_LDS, K2_VGPR))
    from gen_k3 import *
    kernels.append(("k3_kernel", gen_k3(), 256, 512, K3_LDS, 256))
    kernels.append(("k4_kernel", gen_k4(), 256, 512, K4_LDS, 72))
except ImportError as e:
    print("partial build:", e)
out = "\n".join(hdr) + "\n"
for n, A, g, b, lds, vg in kernels:
    out += f"; @launch kernel={n} grid=({g},1,1) block=({b},1,1) lds={lds}\n"
out += '.amdgcn_target "amdgcn-amd-amdhsa--gfx950"\n.text\n'
for n, A, g, b, lds, vg in kernels:
    out += kern_head(n) + A.render()
out += '.section .rodata,"a"\n'
for n, A, g, b, lds, vg in kernels:
    out += kern_desc(n, vg)
path = sys.argv[1] if len(sys.argv) > 1 else "k.s"
open(path, "w").write(out)
print("wrote", path, len(out))
```

```python
from asmlib import *
import struct, os
def fl(x): return "0x%08x" % struct.unpack("<I", struct.pack("<f", x))[0]

SLAB_OFF = 0
MOD_OFF  = 0x200000
SHP_OFF  = 0x204000
FLAG_OFF = 0x210000
F2_REL   = 0x8000
FLAG_BYTES = 0x10000
STS_OFF  = 0x280000
LOW_BYTES = 0x300000
WQ_OFF   = 0x400000
WQ_CHUNK = 688128
WQ_P2    = 458752
X1_OFF   = 0xA00000
ACT_OFF  = 0xC00000
ACT_BYTES = 256 * 28672

def srd(A, d, base, nbytes, add=0):
    if add:
        A(f"s_add_u32 s{d}, s{base}, {hex(add)}")
        A(f"s_addc_u32 s{d+1}, s{base+1}, 0")
    else:
        A(f"s_mov_b32 s{d}, s{base}")
        A(f"s_mov_b32 s{d+1}, s{base+1}")
    A(f"s_mov_b32 s{d+2}, {hex(nbytes)}")
    A(f"s_mov_b32 s{d+3}, 0x20000")

def kern_head(name):
    return f".globl {name}\n.p2align 8\n.type {name},@function\n{name}:\n"

def kern_desc(name, vgpr, sgpr=102, accum=None):
    accum = accum or ((vgpr + 3) // 4 * 4)
    return f""".p2align 6
.amdhsa_kernel {name}
  .amdhsa_next_free_vgpr {vgpr}
  .amdhsa_next_free_sgpr {sgpr}
  .amdhsa_accum_offset {accum}
  .amdhsa_group_segment_fixed_size 0
  .amdhsa_kernarg_size 112
  .amdhsa_user_sgpr_count 2
  .amdhsa_user_sgpr_kernarg_segment_ptr 1
  .amdhsa_system_sgpr_workgroup_id_x 1
.end_amdhsa_kernel
"""

STAMPS = os.environ.get("STAMPS", "0") == "1"
STAMP_OFF = 0x8000000
ST0 = 72
def stamp(A, k):
    if STAMPS:
        A("s_memrealtime s[94:95]")
        A("s_waitcnt lgkmcnt(0)")
        A(f"s_mov_b32 s{ST0+k}, s94")
def stamp_init(A, n):
    if STAMPS:
        for k in range(n): A(f"s_mov_b32 s{ST0+k}, 0")
def stamp_flush(A, kern, n, tid="v0"):
    if not STAMPS: return
    stamp(A, n - 1)
    A("s_mov_b64 exec, -1")
    srd(A, 96, 4, 0x1000000, STAMP_OFF + kern * 0x100000)
    A(f"v_lshrrev_b32 v1, 6, {tid}")
    A("v_lshlrev_b32 v1, 7, v1")
    A("s_lshl_b32 s94, s2, 10")
    A("s_mov_b64 exec, 1")
    for k in range(n):
        A(f"v_mov_b32 v2, s{ST0+k}")
        A(f"buffer_store_dword v2, v1, s[96:99], s94 offen offset:{4*k}")
```

```python
from gen_common import *

K1_SLAB, K1_GEMV, K1_REL = 64, 96, 84
K1_GRID = K1_SLAB + K1_GEMV + K1_REL
RS = 576
K1_LDS = 64 * RS
K1_VGPR = 128

def gen_k1(code_prefetch=None):
    A = Asm()
    A(f"s_cmp_ge_u32 s2, {K1_GRID}")
    A("s_cbranch_scc1 K1_end")
    stamp_init(A, 4); stamp(A, 0)
    A("s_load_dwordx2 s[4:5], s[0:1], 104")
    A(f"s_cmp_ge_u32 s2, {K1_SLAB + K1_GEMV}")
    A("s_cbranch_scc1 K1_rel")
    A(f"s_cmp_ge_u32 s2, {K1_SLAB}")
    A("s_cbranch_scc1 K1_gemv")
    A("s_load_dwordx2 s[6:7], s[0:1], 0")
    A("s_and_b32 s16, s2, 31")
    A("s_lshr_b32 s17, s2, 5")
    A("s_lshl_b32 s18, s17, 9")
    A("s_xor_b32 s20, s18, 512")
    A("s_lshl_b32 s21, s17, 5")
    A("v_lshrrev_b32 v1, 3, v0")
    A("v_xor_b32 v1, s21, v1")
    A("v_and_b32 v2, 7, v0")
    A("v_lshlrev_b32 v2, 4, v2")
    A("v_lshl_add_u32 v3, v1, 15, v2")
    A("s_lshl_b32 s19, s16, 10")
    A("v_add_u32 v3, s19, v3")
    A("s_waitcnt lgkmcnt(0)")
    srd(A, 8, 6, 0x200000)
    D = 32
    for i in range(8):
        A(f"buffer_load_dwordx4 {v(D+4*i,4)}, v3, s[8:11], {'s18' if i < 4 else 's20'} offen offset:{(i&3)*128}")
    srd(A, 12, 4, 0x200000, SLAB_OFF)
    A(f"v_mul_u32_u24 v4, {RS}, v1")
    A("v_add_u32 v4, v4, v2")
    A("v_and_b32 v5, 63, v0")
    A("v_lshrrev_b32 v6, 6, v0")
    A("v_and_b32 v7, 31, v5")
    A("v_lshrrev_b32 v8, 5, v5")
    A("v_and_b32 v9, 3, v6")
    A("v_lshrrev_b32 v10, 2, v6")
    A("v_cmp_eq_u32 vcc, 0, v7")
    A("v_cndmask_b32 v11, v7, 32, vcc")
    A(f"v_mov_b32 v12, {fl(0.25)}")
    A("v_cndmask_b32 v12, v12, 0, vcc")
    A("v_cmp_eq_u32 vcc, 0, v10")
    A("v_cndmask_b32 v11, v11, v7, vcc")
    A("v_cndmask_b32 v12, v12, 0, vcc")
    A("v_cvt_f32_u32 v11, v11")
    A(f"v_mul_f32 v11, {fl(1/64)}, v11")
    A("v_lshlrev_b32 v13, 3, v8")
    A("v_cvt_f32_u32 v13, v13")
    A("v_fma_f32 v12, v11, v13, v12")
    F = 64; T = 80
    for ks in range(4):
        for j in range(8): A(f"v_fmamk_f32 v{T+j}, v11, {fl(float(16*ks+j))}, v12")
        for j in range(8): A(f"v_cos_f32 v{T+j}, v{T+j}")
        for j in range(4): A(f"v_cvt_pk_f16_f32 v{F+4*ks+j}, v{T+2*j}, v{T+2*j+1}")
    A("v_and_b32 v14, 15, v5")
    A("v_lshrrev_b32 v15, 2, v14")
    A("v_lshl_add_u32 v15, v8, 3, v15")
    A(f"v_mul_u32_u24 v15, {RS}, v15")
    A("v_bfe_u32 v16, v5, 4, 1")
    A("v_lshlrev_b32 v16, 2, v16")
    A("v_and_b32 v17, 1, v14")
    A("v_lshl_or_b32 v16, v17, 1, v16")
    A("v_bfe_u32 v17, v14, 1, 1")
    A("v_or_b32 v16, v16, v17")
    A("v_lshlrev_b32 v16, 3, v16")
    A("v_lshl_add_u32 v16, v9, 7, v16")
    A("v_add_u32 v15, v15, v16")
    A("v_lshl_add_u32 v18, v7, 1, v10")
    A("v_lshlrev_b32 v18, 15, v18")
    A("v_lshl_add_u32 v18, v9, 7, v18")
    A("v_lshl_add_u32 v18, v8, 4, v18")
    A("s_add_u32 s18, s18, s19")
    A("v_mov_b32 v20, 0\nv_mov_b32 v21, 0\nv_mov_b32 v22, 0\nv_mov_b32 v23, 0")
    A("s_mov_b32 s30, 0x3f803f80")
    for i in range(8):
        A(f"s_waitcnt vmcnt({7-i})")
        for j in range(4):
            r = D + 4*i + j
            A(f"v_dot2c_f32_bf16 v{20+(j&1)}, s30, v{r}")
            A(f"v_dot2c_f32_bf16 v{22+(j&1)}, v{r}, v{r}")
    stamp(A, 1)
    A("v_add_f32 v20, v20, v21")
    A("v_add_f32 v22, v22, v23")
    for m in ("quad_perm:[1,0,3,2]", "quad_perm:[2,3,0,1]", "row_half_mirror"):
        A(f"v_add_f32_dpp v20, v20, v20 {m} row_mask:0xf bank_mask:0xf")
        A(f"v_add_f32_dpp v22, v22, v22 {m} row_mask:0xf bank_mask:0xf")
    A(f"v_mul_f32 v20, {fl(1/512)}, v20")
    A(f"v_mul_f32 v22, {fl(1/512)}, v22")
    A("v_fma_f32 v22, -v20, v20, v22")
    A("v_max_f32 v22, 0, v22")
    A(f"v_add_f32 v22, {fl(1e-5)}, v22")
    A("v_rsq_f32 v22, v22")
    A("v_mul_f32 v20, v20, v22")
    A("v_mov_b32 v23, v22")
    A("v_sub_f32 v20, 0, v20")
    A("v_mov_b32 v21, v20")
    A("s_mov_b32 s31, 0xffff0000")
    for i in range(4):
        for j in range(4):
            r = D + 4*i + j
            t = 24 + 2*(j & 1)
            A(f"v_lshlrev_b32 v{t}, 16, v{r}")
            A(f"v_and_b32 v{t+1}, s31, v{r}")
            A(f"v_pk_fma_f32 {v(t,2)}, {v(t,2)}, v[22:23], v[20:21]")
            A(f"v_cvt_pk_f16_f32 v{r}, v{t}, v{t+1}")
        A(f"ds_write_b128 v4, {v(D+4*i,4)} offset:{128*i}")
    A("s_waitcnt lgkmcnt(0)")
    A("s_barrier")
    stamp(A, 2)
    Af = 32
    for t in range(2):
        for ks in range(4):
            for q in range(2):
                A(f"ds_read_b64_tr_b16 {v(Af+16*t+4*ks+2*q,2)}, v15 offset:{(16*ks+4*q)*RS + 64*t}")
    C = 96
    for t in range(2):
        for ks in range(4):
            A(f"s_waitcnt lgkmcnt({14-8*t-2*ks})")
            A(f"v_mfma_f32_32x32x16_f16 {v(C+16*t,16)}, {v(Af+16*t+4*ks,4)}, {v(F+4*ks,4)}, {'0' if ks==0 else v(C+16*t,16)}")
    for t in range(2):
        for j in range(8):
            A(f"v_cvt_pk_f16_f32 v{80+8*t+j}, v{C+16*t+2*j}, v{C+16*t+2*j+1}")
        A(f"buffer_store_dwordx4 {v(80+8*t,4)}, v18, s[12:15], s18 offen offset:{64*t}")
        A(f"buffer_store_dwordx4 {v(84+8*t,4)}, v18, s[12:15], s18 offen offset:{64*t+32}")
    if STAMPS: A("s_waitcnt vmcnt(0)")
    stamp_flush(A, 0, 4)
    A("s_endpgm")
    A.label("K1_gemv")
    A("s_load_dwordx4 s[16:19], s[0:1], 72")
    A(f"s_sub_u32 s3, s2, {K1_SLAB}")
    A("v_lshrrev_b32 v1, 2, v0")
    A("v_and_b32 v2, 3, v0")
    A("v_mul_u32_u24 v3, 6144, v1")
    A("v_lshl_add_u32 v3, v2, 4, v3")
    A("s_lshl_b32 s20, s3, 6")
    for i in range(1, 4): A(f"s_add_u32 s{20+i}, s{19+i}, {128*6144}")
    A("v_lshlrev_b32 v4, 1, v1")
    A("s_waitcnt lgkmcnt(0)")
    srd(A, 8, 18, 512*3072*2)
    srd(A, 12, 16, 1024)
    D = 32
    for i in range(4): A(f"buffer_load_dwordx4 {v(D+4*i,4)}, v3, s[8:11], s{20+i} offen")
    for i in range(4): A(f"buffer_load_ushort v{16+i}, v4, s[12:15], 0 offen offset:{256*i}")
    srd(A, 12, 4, LOW_BYTES)
    A("s_cmp_eq_u32 s3, 0")
    A("s_cbranch_scc0 K1_noz")
    A("v_mov_b32 v48, 0\nv_mov_b32 v49, 0\nv_mov_b32 v50, 0\nv_mov_b32 v51, 0")
    A("v_lshlrev_b32 v5, 7, v0")
    A(f"s_mov_b32 s24, {FLAG_OFF}")
    A("buffer_store_dwordx4 v[48:51], v5, s[12:15], s24 offen")
    A("buffer_store_dwordx4 v[48:51], v5, s[12:15], s24 offen offset:16")
    A.label("K1_noz")
    if code_prefetch:
        lab, nbytes = code_prefetch
        A("s_sub_u32 s24, s3, 8")
        A("s_cmp_lt_u32 s24, 8")
        A("s_cbranch_scc0 K1_nopf")
        A("s_getpc_b64 s[26:27]")
        A.label("K1_pc")
        A(f"s_add_u32 s26, s26, {lab}-K1_pc")
        A("s_addc_u32 s27, s27, 0")
        A("v_lshlrev_b32 v5, 6, v0")
        A(f"v_cmp_gt_u32 vcc, {nbytes}, v5")
        A("s_and_saveexec_b64 s[28:29], vcc")
        A("s_cbranch_execz K1_pfskip")
        A("global_load_dword v52, v5, s[26:27]")
        A.label("K1_pfskip")
        A("s_mov_b64 exec, s[28:29]")
        A.label("K1_nopf")
    A("v_and_b32 v6, 63, v0")
    A("v_lshrrev_b32 v5, 4, v0")
    A("v_lshlrev_b32 v5, 7, v5")
    A("v_lshl_add_u32 v5, v2, 5, v5")
    A("v_and_b32 v7, 31, v0")
    A("v_bfe_u32 v8, v0, 5, 1")
    A("v_lshlrev_b32 v8, 11, v8")
    A("v_lshl_add_u32 v8, v7, 2, v8")
    for j in range(8): A(f"v_mov_b32 v{64+j}, 0")
    A("s_cmp_lt_u32 s3, 16")
    A("s_cbranch_scc0 K1_nocos")
    A("v_lshrrev_b32 v9, 6, v0")
    A("v_lshl_add_u32 v9, v9, 5, v7")
    A("v_cmp_eq_u32 vcc, 32, v0")
    A("v_mov_b32 v10, 0x100")
    A("v_cndmask_b32 v9, v9, v10, vcc")
    A("v_cvt_f32_u32 v9, v9")
    A(f"v_mul_f32 v9, {fl(1/512)}, v9")
    A("s_lshl_b32 s24, s3, 5")
    A("v_cvt_f32_u32 v10, s24")
    A("v_mul_f32 v10, v9, v10")
    for k in range(32): A(f"v_fmamk_f32 v{80+k}, v9, {fl(float(k))}, v10")
    for k in range(32): A(f"v_cos_f32 v{80+k}, v{80+k}")
    A.label("K1_nocos")
    A("s_waitcnt vmcnt(0)")
    for i in range(4):
        A(f"v_lshlrev_b32 v{16+i}, 16, v{16+i}")
        A(f"v_mul_f32 v{24+i}, {fl(-1.4426950408889634)}, v{16+i}")
    for i in range(4): A(f"v_exp_f32 v{24+i}, v{24+i}")
    for i in range(4): A(f"v_add_f32 v{24+i}, 1.0, v{24+i}")
    for i in range(4): A(f"v_rcp_f32 v{24+i}, v{24+i}")
    for i in range(4): A(f"v_mul_f32 v{16+i}, v{16+i}, v{24+i}")
    for i in range(4): A(f"v_cvt_pk_bf16_f32 v{16+i}, v{16+i}, 0")
    for i in range(4): A(f"v_lshlrev_b32 v{24+i}, 16, v{16+i}")
    for i in range(4):
        for j in range(4):
            A(f"v_dot2c_f32_bf16 v{64+2*j}, v{16+i}, v{D+4*i+j}")
            A(f"v_dot2c_f32_bf16 v{65+2*j}, v{24+i}, v{D+4*i+j}")
    stamp(A, 1)
    for m in ("row_ror:4", "row_ror:8"):
        for j in range(8): A(f"v_add_f32_dpp v{64+j}, v{64+j}, v{64+j} {m} row_mask:0xf bank_mask:0xf")
    A("s_mov_b32 exec_lo, 0x000f000f")
    A("s_mov_b32 exec_hi, 0x000f000f")
    A("ds_write_b128 v5, v[64:67]")
    A("ds_write_b128 v5, v[68:71] offset:16")
    A("s_mov_b64 exec, -1")
    A("s_waitcnt lgkmcnt(0)")
    A("s_barrier")
    A("v_cmp_gt_u32 vcc, 64, v0")
    A("s_and_saveexec_b64 s[30:31], vcc")
    A("s_cbranch_execz K1_gv2")
    for i in range(16): A(f"ds_read_b32 v{16+i}, v8 offset:{128*i}")
    A("s_lshr_b32 s28, s3, 4")
    A("s_and_b32 s29, s3, 15")
    A("s_lshl_b32 s29, s29, 5")
    A("v_add_u32 v10, s29, v7")
    A("v_sub_u32 v11, 0x200, v10")
    A("v_and_b32 v11, 0xff, v11")
    A("v_cmp_gt_u32 vcc, 0x100, v10")
    A("v_cndmask_b32 v12, v11, v10, vcc")
    A("v_cndmask_b32 v13, 32, 0, vcc")
    A("v_lshrrev_b32 v14, 5, v12")
    A("v_and_b32 v12, 31, v12")
    A("v_lshl_add_u32 v12, v14, 6, v12")
    A("v_add_u32 v12, v12, v13")
    A("s_sub_u32 s32, s28, 2")
    A("s_cmp_lt_u32 s32, 3")
    A("s_cselect_b64 vcc, -1, 0")
    A("v_cndmask_b32 v10, v10, v12, vcc")
    A("v_lshlrev_b32 v10, 2, v10")
    A("s_lshl_b32 s33, s28, 11")
    A(f"s_add_u32 s33, s33, {MOD_OFF}")
    A("s_cmp_eq_u32 s28, 1")
    A("s_cselect_b32 s34, 1.0, 0")
    A(f"s_cselect_b32 s35, {fl(1/256)}, 1.0")
    A("s_cmp_eq_u32 s28, 4")
    A("s_cselect_b32 s34, 1.0, s34")
    A("s_cmp_eq_u32 s28, 2")
    A(f"s_cselect_b32 s35, {fl(256.0)}, s35")
    A("s_waitcnt lgkmcnt(0)")
    for st in (8, 4, 2, 1):
        for i in range(st): A(f"v_add_f32 v{16+i}, v{16+i}, v{16+st+i}")
    A("v_mov_b32 v17, v16")
    A("v_permlane32_swap_b32 v16, v17")
    A("v_add_f32 v16, v16, v17")
    A("v_cvt_pk_bf16_f32 v16, v16, 0")
    A("v_lshlrev_b32 v16, 16, v16")
    A("v_add_f32 v16, s34, v16")
    A("v_cvt_pk_bf16_f32 v16, v16, 0")
    A("v_lshlrev_b32 v16, 16, v16")
    A("v_mul_f32 v16, s35, v16")
    A("s_mov_b32 exec_hi, 0")
    A("buffer_store_dword v16, v10, s[12:15], s33 offen")
    A("ds_write_b32 v8, v16 offset:4096")
    A("s_waitcnt lgkmcnt(0)")
    A.label("K1_gv2")
    A("s_mov_b64 exec, -1")
    A("s_cmp_lt_u32 s3, 16")
    A("s_cbranch_scc0 K1_gv3")
    A("s_barrier")
    A("v_mov_b32 v9, 0")
    for k in range(8): A(f"ds_read_b128 {v(16+4*k,4)}, v9 offset:{4096+16*k}")
    A("v_lshlrev_b32 v10, 2, v0")
    A("s_lshl_b32 s24, s3, 11")
    A(f"s_add_u32 s24, s24, {SHP_OFF}")
    A("s_waitcnt lgkmcnt(0)")
    A("v_mul_f32 v12, v16, v80")
    A("v_mul_f32 v13, v17, v81")
    for k in range(2, 32): A(f"v_fmac_f32 v{12+(k&1)}, v{16+k}, v{80+k}")
    A("v_add_f32 v12, v12, v13")
    A("buffer_store_dword v12, v10, s[12:15], s24 offen")
    A.label("K1_gv3")
    if STAMPS: A("s_waitcnt vmcnt(0)")
    stamp_flush(A, 0, 4)
    A("s_endpgm")
    A.label("K1_rel")
    A("s_load_dwordx4 s[16:19], s[0:1], 48")
    A("s_load_dwordx2 s[6:7], s[0:1], 64")
    A("v_lshrrev_b32 v1, 6, v0")
    A("v_readfirstlane_b32 s3, v1")
    A("v_and_b32 v2, 63, v0")
    A("v_and_b32 v3, 31, v2")
    A("v_lshrrev_b32 v4, 5, v2")
    A(f"s_sub_u32 s36, s2, {K1_SLAB + K1_GEMV}")
    A("s_lshl_b32 s36, s36, 3")
    A("s_add_u32 s36, s36, s3")
    A("s_cmp_ge_u32 s36, 448")
    A("s_cbranch_scc1 K1_rel_d")
    A("v_lshlrev_b32 v5, 4, v2")
    A("s_cmp_ge_u32 s36, 224")
    A("s_cselect_b32 s37, 1, 0")
    A("s_mul_i32 s38, s37, 224")
    A("s_sub_u32 s38, s36, s38")
    A("s_lshr_b32 s39, s38, 5")
    A("s_and_b32 s40, s38, 31")
    A("s_lshr_b32 s41, s40, 2")
    A("s_lshl_b32 s41, s41, 5")
    A("s_and_b32 s42, s40, 1")
    A("s_lshl_b32 s42, s42, 4")
    A("s_add_u32 s41, s41, s42")
    A("v_lshl_add_u32 v6, v4, 3, s41")
    A("s_bitcmp1_b32 s40, 1")
    A("s_cbranch_scc1 K1_rel_mir")
    for r in range(8): A(f"s_mov_b32 s{20+r}, {r*3584}")
    A("v_mov_b32 v7, v6")
    A("s_branch K1_rel_gu2")
    A.label("K1_rel_mir")
    for r in range(8): A(f"s_mov_b32 s{20+r}, {(7-r)*3584}")
    A("v_sub_u32 v6, 505, v6")
    A("v_cmp_eq_u32 vcc, 505, v6")
    A("v_mov_b32 v7, 249")
    A("v_cndmask_b32 v7, v6, v7, vcc")
    A.label("K1_rel_gu2")
    A("s_movk_i32 s43, 3584")
    A("v_mul_lo_u32 v6, v6, s43")
    A("v_mul_lo_u32 v7, v7, s43")
    A("s_lshl_b32 s44, s39, 9")
    A("v_lshl_add_u32 v8, v3, 4, s44")
    A("v_add_u32 v6, v6, v8")
    A("v_add_u32 v7, v7, v8")
    A("s_lshl_b32 s45, s39, 16")
    A("s_lshl_b32 s46, s40, 1")
    A("s_add_u32 s46, s46, s37")
    A("s_lshl_b32 s46, s46, 10")
    A("s_add_u32 s28, s45, s46")
    for q in range(1, 8): A(f"s_add_u32 s{28+q}, s{27+q}, {WQ_CHUNK}")
    A("s_waitcnt lgkmcnt(0)")
    A("s_cmp_eq_u32 s37, 0")
    A("s_cselect_b32 s8, s16, s18")
    A("s_cselect_b32 s9, s17, s19")
    A("s_branch K1_rel_go")
    A.label("K1_rel_d")
    A("s_sub_u32 s36, s36, 448")
    A("s_and_b32 s37, s36, 7")
    A("s_lshr_b32 s38, s36, 4")
    A("s_bfe_u32 s39, s36, 0x10003")
    A("s_lshl_b32 s40, s38, 7")
    A("s_add_u32 s40, s40, s37")
    A("v_lshl_add_u32 v6, v4, 5, s40")
    A("v_lshlrev_b32 v6, 10, v6")
    A("s_lshl_b32 s44, s39, 9")
    A("v_lshl_add_u32 v8, v3, 4, s44")
    A("v_add_u32 v6, v6, v8")
    A("v_mov_b32 v7, v6")
    A("v_lshrrev_b32 v5, 3, v3")
    A("v_mul_u32_u24 v5, 28672, v5")
    A("v_lshl_add_u32 v5, v4, 9, v5")
    A("v_and_b32 v9, 7, v3")
    A("v_lshl_add_u32 v5, v9, 4, v5")
    for r in range(8): A(f"s_mov_b32 s{20+r}, {(64*(r>>2) + 8*(r&3))*1024}")
    A(f"s_mul_i32 s45, s37, {WQ_CHUNK}")
    A(f"s_mul_i32 s46, s39, {4*28672}")
    A("s_add_u32 s45, s45, s46")
    A("s_lshl_b32 s46, s38, 11")
    A("s_add_u32 s45, s45, s46")
    for q in range(8): A(f"s_add_u32 s{28+q}, s45, {WQ_P2 + (q>>2)*1024 + (q&3)*128}")
    A("s_waitcnt lgkmcnt(0)")
    A("s_mov_b32 s8, s6")
    A("s_mov_b32 s9, s7")
    A.label("K1_rel_go")
    A(f"s_mov_b32 s10, {512*1792*2}")
    A("s_mov_b32 s11, 0x20000")
    D = 16
    for r in range(8):
        A(f"buffer_load_dwordx4 {v(D+4*r,4)}, {'v7' if r==0 else 'v6'}, s[8:11], s{20+r} offen")
    srd(A, 12, 4, 8*WQ_CHUNK, WQ_OFF)
    A("s_mov_b32 s48, 0x05040100")
    A("s_mov_b32 s49, 0x07060302")
    O = 48
    for rp in range(4):
        A(f"s_waitcnt vmcnt({6-2*rp})")
        for c in range(4):
            A(f"v_perm_b32 v{O+8*c+rp}, v{D+8*rp+4+c}, v{D+8*rp+c}, s48")
            A(f"v_perm_b32 v{O+8*c+4+rp}, v{D+8*rp+4+c}, v{D+8*rp+c}, s49")
    stamp(A, 1)
    for q in range(8):
        A(f"buffer_store_dwordx4 {v(O+4*q,4)}, v5, s[12:15], s{28+q} offen")
    if STAMPS: A("s_waitcnt vmcnt(0)")
    stamp_flush(A, 0, 4)
    A.label("K1_end")
    A("s_endpgm")
    return A
```

```python
from gen_common import *
import math

MATL = 65536
ZL = 131072
SHL = ZL + 8192
STATL = SHL + 1024
GOL = STATL + 512
KF_LDS = GOL + 64
HWL = 65536
REDL = 65536; RCH = 1056; RSRC = 8 * RCH
CPX = int(os.environ.get("CPX", "2"))
RING = 40
R = 96
NF = 92
H1 = int(os.environ.get("H1", "12"))
E1 = int(os.environ.get("E1", "16"))
LN_LD = 0
N1 = int(os.environ.get("N1", "28"))
PACE = int(os.environ.get("PACE", "0"))
HWK = int(os.environ.get("HWK", "99"))
PRE = int(os.environ.get("PRE", "0"))
W7E = int(os.environ.get("W7E", "8"))
W7N = int(os.environ.get("W7N", "16"))
LG = int(os.environ.get("LG", "12"))
LO1 = int(os.environ.get("LO1", "40"))
WDT = int(os.environ.get("WDT", "0"))
WD1 = int(os.environ.get("WD1", "2"))
WDK = int(os.environ.get("WDK", "18"))
SL1 = int(os.environ.get("SL1", "2"))
SL2 = int(os.environ.get("SL2", "4"))
SPIN = 100000

def map_gj(A, sg, sj, t0, t1):
    lc = int(math.log2(CPX)); ns = 8 // CPX; lns = 3 - lc
    A(f"s_and_b32 s{t0}, s2, {ns-1}")
    A(f"s_lshl_b32 s{t0}, s{t0}, {lc}")
    A(f"s_lshr_b32 s{t1}, s2, 3")
    A(f"s_and_b32 s{sj}, s{t1}, {CPX-1}")
    A(f"s_add_u32 s{sj}, s{sj}, s{t0}")
    A(f"s_lshr_b32 s{t1}, s{t1}, {lc}")
    A(f"s_and_b32 s{t0}, s2, 7")
    A(f"s_lshr_b32 s{t0}, s{t0}, {lns}")
    A(f"s_lshl_b32 s{t0}, s{t0}, {5-lc}")
    A(f"s_add_u32 s{sg}, s{t0}, s{t1}")

def gen_kf():
    A = Asm()
    A("s_cmp_ge_u32 s2, 256")
    A("s_cbranch_scc1 KF_end")
    stamp_init(A, 20); stamp(A, 0)
    A("s_load_dwordx2 s[4:5], s[0:1], 104")
    A("s_load_dwordx2 s[6:7], s[0:1], 0")
    A("s_load_dwordx2 s[68:69], s[0:1], 88")
    A("v_lshrrev_b32 v1, 6, v0")
    A("v_readfirstlane_b32 s3, v1")
    A("s_bfe_u32 s20, s2, 0x30003")
    A("s_and_b32 s21, s2, 7")
    A("s_lshl_b32 s21, s21, 2")
    A("s_lshr_b32 s22, s2, 6")
    A("s_add_u32 s21, s21, s22")
    A("v_and_b32 v2, 63, v0")
    A("v_and_b32 v3, 31, v2")
    A("v_lshrrev_b32 v4, 5, v2")
    A("v_lshlrev_b32 v5, 4, v2")
    A("v_lshlrev_b32 v6, 5, v2")
    A("s_add_u32 s70, s3, s20")
    A("s_and_b32 s70, s70, 7")
    A("s_lshl_b32 s25, s3, 13")
    A("s_lshl_b32 s26, s70, 13")
    CA = 64; X = 72; Y = 80
    A("s_and_b32 s22, s70, 1")
    A("s_lshl_b32 s22, s22, 3")
    for i in range(8):
        A(f"s_add_u32 s24, s22, {i}")
        A(f"v_xor_b32 v{Y+i}, s24, v2")
        A(f"v_lshlrev_b32 v{Y+i}, 4, v{Y+i}")
    A("s_lshl_b32 s24, s21, 16")
    A("s_add_u32 s24, s24, s26")
    A(f"s_mov_b32 s27, {MOD_OFF + 2048}")
    A("s_mov_b32 m0, s26")
    def dma_issue():
        A("s_waitcnt lgkmcnt(0)")
        srd(A, 8, 4, LOW_BYTES, 0)
        A(f"buffer_load_dwordx4 {v(CA,4)}, v6, s[8:11], s27 offen")
        A(f"buffer_load_dwordx4 {v(CA+4,4)}, v6, s[8:11], s27 offen offset:16")
        for i in range(4):
            A(f"buffer_load_dwordx4 v{Y+i}, s[8:11], s24 offen offset:{i*1024} lds")
        A("s_add_u32 s24, s24, 4096")
        A("s_add_u32 m0, s26, 4096")
        for i in range(4, 8):
            A(f"buffer_load_dwordx4 v{Y+i}, s[8:11], s24 offen offset:{(i&3)*1024} lds")
    A("s_cmp_lt_u32 s3, 4")
    A("s_cbranch_scc0 KF_nodma")
    dma_issue()
    A.label("KF_nodma")
    G = 128; GX = 192; P = 200; DK = 24; K2 = 16
    A("v_lshlrev_b32 v8, 3, v2")
    A("v_cvt_f32_u32 v8, v8")
    A(f"v_mul_f32 v{DK}, {fl(1/512)}, v8")
    for k in range(1, 8): A(f"v_add_f32 v{DK+k}, {fl(k/512)}, v{DK}")
    A("s_and_b32 s28, s3, 3")
    A("s_lshl_b32 s28, s28, 3")
    A("s_lshl_b32 s29, s20, 5")
    A("s_add_u32 s28, s28, s29")
    A("s_cmp_lt_u32 s3, 4")
    A(f"s_cselect_b32 s29, 0, {fl(0.25)}")
    A("s_lshl_b32 s30, s20, 3")
    A("s_add_u32 s30, s30, s3")
    A("s_cmp_eq_u32 s30, 4")
    A("s_cselect_b32 s31, 0x100, s28")
    A("s_cselect_b32 s32, 0, s29")
    A("v_cvt_f32_u32 v9, s31")
    A("v_cvt_f32_u32 v10, s28")
    for k in range(8): A(f"v_cos_f32 v{K2+k}, v{DK+k}")
    for k in range(8): A(f"v_fma_f32 v{GX+k}, v{DK+k}, v9, s32")
    for k in range(8): A(f"v_fma_f32 v{G+k}, v{DK+k}, v10, s29")
    for k in range(8): A(f"v_add_f32 v{G+8+k}, v{G+k}, v{DK+k}")
    for k in range(8): A(f"v_cos_f32 v{GX+k}, v{GX+k}")
    for k in range(16): A(f"v_cos_f32 v{G+k}, v{G+k}")
    for k in range(8): A(f"v_add_f32 v{K2+k}, v{K2+k}, v{K2+k}")
    M = 176; CT = 32; ST = 48; XD = 232; GA = 240; XS = 14
    A("s_and_b32 s36, s3, 1")
    A("s_bfe_u32 s37, s3, 0x10001")
    A("s_cmp_lt_u32 s3, 4")
    A("s_cbranch_scc1 KF_noxl")
    dma_issue()
    A("v_lshlrev_b32 v7, 6, v3")
    A("v_add_u32 v7, s21, v7")
    A("s_cmp_eq_u32 s36, 0")
    A("s_cbranch_scc1 KF_tok_done")
    A("v_add_u32 v8, 32, v7")
    A("v_sub_u32 v7, 0x800, v7")
    A("s_cmp_eq_u32 s21, 0")
    A("s_cselect_b64 vcc, -1, 0")
    A("v_cndmask_b32 v7, v7, v8, vcc")
    A.label("KF_tok_done")
    srd(A, 40, 6, 0x200000)
    A("v_lshlrev_b32 v8, 10, v7")
    A("s_lshl_b32 s38, s20, 6")
    A("v_lshl_add_u32 v9, v4, 4, s38")
    A("v_sub_u32 v10, 1008, v9")
    A("s_cmp_eq_u32 s37, 0")
    A("s_cselect_b64 vcc, -1, 0")
    A("s_cselect_b32 s44, 32, -32")
    A("v_cndmask_b32 v10, v10, v9, vcc")
    A("v_add_u32 v10, v8, v10")
    A("v_add_u32 v11, s44, v10")
    A(f"buffer_load_dwordx4 {v(XD,4)}, v10, s[40:43], 0 offen")
    A(f"buffer_load_dwordx4 {v(XD+4,4)}, v11, s[40:43], 0 offen")
    A(f"buffer_load_ushort v{XS+1}, v11, s[40:43], 0 offen offset:16")
    A("v_sub_u32 v11, 0x400, v9")
    A("v_cmp_eq_u32 vcc, 0, v9")
    A("v_mov_b32 v12, 0x200")
    A("s_lshl_b32 s39, s20, 8")
    A("v_cndmask_b32 v11, v11, v12, vcc")
    A("v_add_u32 v11, v8, v11")
    A(f"buffer_load_ushort v{XS}, v11, s[40:43], 0 offen")
    A("s_lshl_b32 s44, s37, 7")
    A("s_add_u32 s44, s39, s44")
    A(f"s_add_u32 s44, s44, {MOD_OFF + 4096}")
    A("v_lshlrev_b32 v12, 5, v4")
    for q in range(2):
        for z in range(2):
            A(f"buffer_load_dwordx4 {v(GA+8*q+4*z,4)}, v12, s[8:11], s44 offen offset:{64*q+16*z}")
    A.label("KF_noxl")
    A("s_waitcnt lgkmcnt(0)")
    srd(A, 8, 4, LOW_BYTES, 0)
    map_gj(A, 61, 60, 22, 24)
    srd(A, 12, 4, 8*WQ_CHUNK, WQ_OFF)
    A(f"s_mul_i32 s62, s60, {WQ_CHUNK}")
    A("s_lshl_b32 s22, s21, 1")
    A("s_add_u32 s70, s70, s22")
    A("s_and_b32 s70, s70, 7")
    A(f"s_mul_i32 s65, s70, {WQ_CHUNK}")
    A("s_mul_i32 s22, s20, 28672")
    A("s_add_u32 s65, s65, s22")
    A(f"s_add_u32 s65, s65, {WQ_P2}")
    A("s_and_b32 s66, s61, 7")
    A("s_lshl_b32 s22, s3, 16")
    A("s_add_u32 s62, s62, s22")
    A("s_lshl_b32 s63, s66, 13")
    A("s_add_u32 s64, s62, s63")
    A("s_lshl_b32 s67, s60, 1")
    A("s_add_u32 s67, s67, s3")
    A("s_and_b32 s67, s67, 7")
    def wload(i):
        if i < 64:
            A(f"buffer_load_dwordx4 {v(R+4*(i%RING),4)}, v5, s[12:15], s64 offen offset:{(i&3)*1024}")
            if (i & 3) == 3:
                A("s_add_u32 s63, s63, 4096")
                A("s_and_b32 s63, s63, 0xffff")
                A("s_add_u32 s64, s62, s63")
        else:
            k = i - 64
            A(f"buffer_load_dwordx4 {v(R+4*(i%RING),4)}, v5, s[12:15], s65 offen offset:{(k&3)*1024}")
            if (k & 3) == 3: A("s_add_u32 s65, s65, 4096")
    def hload(i):
        if i < RING: return wload(i)
        if (i & 3) == 0: A(f"s_add_u32 m0, s55, {(i-RING)*1024}")
        A(f"buffer_load_dwordx4 v5, s[12:15], s64 offen offset:{(i&3)*1024} lds")
        if (i & 3) == 3:
            A("s_add_u32 s63, s63, 4096")
            A("s_and_b32 s63, s63, 0xffff")
            A("s_add_u32 s64, s62, s63")
    A("s_cmp_lt_u32 s3, 4")
    A("s_cbranch_scc1 KF_w8")
    LPW = 28 * CPX
    A(f"s_lshr_b32 s22, s2, {3 + int(math.log2(CPX))}")
    A("s_lshl_b32 s22, s22, 2")
    A("s_and_b32 s24, s3, 3")
    A("s_add_u32 s22, s22, s24")
    A(f"s_mul_i32 s22, s22, {LPW*128}")
    A(f"s_mul_i32 s24, s60, {WQ_CHUNK}")
    A("s_add_u32 s22, s22, s24")
    A(f"v_min_u32 v8, {min(LPW, 56) - 1}, v2")
    A("v_lshlrev_b32 v8, 7, v8")
    NT = (LPW + 55) // 56
    for z in range(NT):
        A(f"buffer_load_dword v1, v8, s[12:15], s22 offen")
        if z + 1 < NT: A(f"s_add_u32 s22, s22, {56*128}")
    A(f"s_waitcnt vmcnt({16+NT})")
    A("s_branch KF_mod")
    A.label("KF_w8")
    A("s_waitcnt vmcnt(8)")
    A.label("KF_mod")
    A("s_and_b32 s22, s3, 1")
    A("s_lshl_b32 s22, s22, 3")
    A(f"s_add_u32 s30, s25, {MATL}")
    for i in range(8):
        A(f"s_add_u32 s24, s22, {i}")
        A(f"v_xor_b32 v{X+i}, s24, v2")
        A(f"v_lshl_add_u32 v{X+i}, v{X+i}, 4, s30")
    for base in (GX, G, G + 8):
        for j in range(4): A(f"v_pk_mul_f32 {v(base+2*j,2)}, {v(base+2*j,2)}, {v(CA+2*j,2)}")
    for i in range(8):
        if i >= 2:
            for j in range(4):
                A(f"v_pk_fma_f32 {v(G+8*i+2*j,2)}, {v(K2+2*j,2)}, {v(G+8*(i-1)+2*j,2)}, {v(G+8*(i-2)+2*j,2)} neg_lo:[0,0,1] neg_hi:[0,0,1]")
        src = GX if i == 0 else G + 8*i
        for j in range(4): A(f"v_cvt_pk_f16_f32 v{P+4*i+j}, v{src+2*j}, v{src+2*j+1}")
        A(f"ds_write_b128 v{X+i}, {v(P+4*i,4)} offset:{i*1024}")
    srd(A, 16, 4, 0x200000, X1_OFF)
    srd(A, 48, 4, ACT_BYTES, ACT_OFF)
    A("s_mov_b32 s58, 0xffff0000")
    A("s_mov_b32 s59, 0x3f803f80")
    stamp(A, 1)
    A("s_cmp_ge_u32 s3, 4")
    A("s_cbranch_scc1 KF_hi")
    AB, BB = 80, 88
    A("v_and_b32 v14, 15, v3")
    A("v_lshlrev_b32 v15, 10, v3")
    A("s_lshl_b32 s46, s36, 15")
    A("v_add_u32 v15, s46, v15")
    A("v_and_b32 v16, 19, v3")
    A("v_bfe_u32 v17, v3, 2, 1")
    A("v_lshl_or_b32 v16, v17, 3, v16")
    A("v_bfe_u32 v17, v3, 3, 1")
    A("v_lshl_or_b32 v16, v17, 2, v16")
    A("v_and_b32 v17, 15, v16")
    A("v_lshlrev_b32 v18, 10, v16")
    A("s_lshl_b32 s46, s37, 15")
    A(f"s_add_u32 s46, s46, {MATL}")
    A("v_add_u32 v18, s46, v18")
    A("v_xor_b32 v14, v14, v4")
    A("v_xor_b32 v17, v17, v4")
    for b in range(8):
        A(f"v_xor_b32 v19, {2*b}, v14")
        A(f"v_lshl_add_u32 v{AB+b}, v19, 4, v15")
        A(f"v_xor_b32 v19, {2*b}, v17")
        A(f"v_lshl_add_u32 v{BB+b}, v19, 4, v18")
    A("s_lshl_b32 s46, s3, 11")
    A(f"s_add_u32 s46, s46, {ZL}")
    A("v_add_u32 v19, s46, v5")
    A("s_waitcnt vmcnt(0) lgkmcnt(0)")
    A("s_barrier")
    stamp(A, 2)
    C = 240; FA = 32; FB = 48; DEP = 4
    def rd(ks):
        b, a_ = ks & 7, ks >> 3
        A(f"ds_read_b128 {v(FA+4*(ks%DEP),4)}, v{AB+b} offset:{a_*256}")
        A(f"ds_read_b128 {v(FB+4*(ks%DEP),4)}, v{BB+b} offset:{a_*256}")
    for ks in range(DEP - 1): rd(ks)
    for ks in range(32):
        if ks + DEP - 1 < 32: rd(ks + DEP - 1)
        out = min(DEP - 1, 31 - ks)
        A(f"s_waitcnt lgkmcnt({2*out})")
        A(f"v_mfma_f32_32x32x16_f16 {v(C,16)}, {v(FA+4*(ks%DEP),4)}, {v(FB+4*(ks%DEP),4)}, {'0' if ks==0 else v(C,16)}")
        n0, n1 = (LG * ks) // 32, (LG * (ks + 1)) // 32
        for i in range(n0, n1): wload(i)
    for k in range(8):
        A(f"v_cvt_pk_f16_f32 v{24+k}, v{C+2*k}, v{C+2*k+1}")
    A("ds_write_b128 v19, v[24:27]")
    A("ds_write_b128 v19, v[28:31] offset:1024")
    A("s_waitcnt lgkmcnt(0)")
    A("s_barrier")
    stamp(A, 3)
    for i in range(LG, LO1): wload(i)
    A("s_cmp_eq_u32 s3, 3")
    A("s_cbranch_scc1 KF_w7poll")
    A("s_branch KF_ffn")
    A.label("KF_hi")
    A("s_setprio 1")
    A(f"s_waitcnt vmcnt({8+NT}) lgkmcnt(0)")
    A("s_barrier")
    stamp(A, 2)
    A("s_lshl_b32 s46, s21, 3")
    A("s_add_u32 s46, s46, s3")
    A("s_cmp_eq_u32 s46, 7")
    A("s_cbranch_scc0 KF_nosl")
    A("v_lshlrev_b32 v22, 2, v2")
    A("s_lshl_b32 s39, s20, 8")
    A(f"s_add_u32 s39, s39, {SHP_OFF}")
    for k in range(16):
        A(f"buffer_load_dword v{128+k}, v22, s[8:11], s39 offen offset:{(k&1)*2048}")
        if k & 1: A("s_add_u32 s39, s39, 4096")
    A.label("KF_nosl")
    A("v_cvt_f32_u32 v19, v7")
    A(f"v_mul_f32 v19, {fl(1/2048)}, v19")
    A("v_lshlrev_b32 v20, 2, v4")
    A("v_cvt_f32_u32 v20, v20")
    A("v_mul_f32 v20, v19, v20")
    for k in range(16):
        s2c = 16*(k >> 3) + 8*((k >> 2) & 1) + (k & 3)
        A(f"v_fmamk_f32 v{ST+k}, v19, {fl(float(s2c))}, v20")
    for k in range(16):
        A(f"v_cos_f32 v{CT+k}, v{ST+k}")
        A(f"v_sin_f32 v{ST+k}, v{ST+k}")
    for k in range(8):
        A(f"v_cvt_pk_f16_f32 v{M+k}, v{CT+2*k}, v{CT+2*k+1}")
        A(f"v_cvt_pk_f16_f32 v{M+16+k}, v{ST+2*k}, v{ST+2*k+1}")
    A("v_lshlrev_b32 v13, 10, v4")
    A("v_lshl_add_u32 v13, v3, 4, v13")
    A("s_lshl_b32 s45, s21, 16")
    A("s_lshl_b32 s46, s20, 13")
    A("s_add_u32 s45, s45, s46")
    A("s_lshl_b32 s46, s37, 12")
    A("s_add_u32 s45, s45, s46")
    A("s_lshl_b32 s46, s36, 9")
    A("s_add_u32 s45, s45, s46")
    A("s_mov_b32 s52, 0x80008000")
    A("s_cmp_eq_u32 s36, 0")
    A("s_cselect_b32 s53, 0, s52")
    A("s_cselect_b32 s56, -1, 0")
    A("s_cselect_b32 s57, 0, -1")
    A("s_cmp_eq_u32 s37, 0")
    A("s_cselect_b32 s54, 0, s52")
    A("s_xor_b32 s55, s53, s54")
    A("s_xor_b32 s55, s55, s52")
    A(f"v_add_u32 v20, {ZL}, v5")
    A("s_lshl_b32 s46, s20, 1")
    A("s_add_u32 s46, s46, s37")
    A("s_cmp_eq_u32 s46, 1")
    A("s_cselect_b32 s46, 4096, 0")
    A("v_cmp_eq_u32 vcc, 0, v3")
    A("v_mov_b32 v21, s46")
    A("v_cndmask_b32 v21, 0, v21, vcc")
    A("v_add_u32 v21, v21, v20")
    A("s_cmp_eq_u32 s21, 0")
    A("s_cbranch_scc1 KF_mspec")
    for k in range(8):
        A(f"v_xor_b32 v{M+8+k}, s53, v{M+16+k}")
        A(f"v_xor_b32 v{M+24+k}, s55, v{M+k}")
        A(f"v_xor_b32 v{M+16+k}, s54, v{M+16+k}")
    A("s_branch KF_mdone")
    A.label("KF_mspec")
    for k in range(8):
        A(f"v_xor_b32 v{M+16+k}, s54, v{M+16+k}")
        A(f"v_and_b32 v{M+8+k}, s57, v{M+k}")
        A(f"v_and_b32 v{M+k}, s56, v{M+k}")
        A(f"v_and_b32 v{M+24+k}, s57, v{M+16+k}")
        A(f"v_and_b32 v{M+16+k}, s56, v{M+16+k}")
    A("s_cmp_eq_u32 s3, 7")
    A("s_cbranch_scc0 KF_mdone")
    A("s_waitcnt vmcnt(0)")
    for st in (8, 4, 2, 1):
        for i in range(st): A(f"v_add_f32 v{128+i}, v{128+i}, v{128+st+i}")
    A(f"v_add_u32 v22, {SHL}, v22")
    A("ds_write_b32 v22, v128")
    A("s_waitcnt lgkmcnt(0)")
    A.label("KF_mdone")
    XU = 64
    A(f"s_waitcnt vmcnt({NT})")
    A("s_cmp_eq_u32 s37, 0")
    A("s_cbranch_scc0 KF_xum")
    for k in range(8):
        A(f"v_lshlrev_b32 v{XU+2*k}, 16, v{XD+k}")
        A(f"v_and_b32 v{XU+2*k+1}, s58, v{XD+k}")
    A("s_branch KF_xud")
    A.label("KF_xum")
    for q in range(2):
        A(f"v_lshlrev_b32 v{XU+8*q}, 16, v{XS+q}")
        for k in range(1, 8):
            el = 8 - k
            r = XD + 4*q + (el >> 1)
            if el & 1: A(f"v_and_b32 v{XU+8*q+k}, s58, v{r}")
            else: A(f"v_lshlrev_b32 v{XU+8*q+k}, 16, v{r}")
    A.label("KF_xud")
    A("s_lshl_b32 s46, s21, 3")
    A("s_add_u32 s46, s46, s20")
    A("s_lshl_b32 s47, s46, 11")
    A("s_and_b32 s44, s3, 3")
    A("s_lshl_b32 s39, s44, 9")
    A("s_add_u32 s47, s47, s39")
    A(f"s_add_u32 s47, s47, {STS_OFF}")
    A("s_lshl_b32 s46, s46, 7")
    A("s_lshl_b32 s44, s44, 2")
    A("s_add_u32 s46, s46, s44")
    A(f"s_add_u32 s46, s46, {FLAG_OFF}")
    A("v_lshlrev_b32 v12, 3, v2")
    A("v_mov_b32 v8, 0\nv_mov_b32 v9, 1\nv_mov_b32 v10, 0\nv_mov_b32 v11, 0")
    stamp(A, 18)
    A("s_barrier")
    stamp(A, 3)
    ZF = 32; C = 208
    for k in range(4): A(f"ds_read_b128 {v(ZF+4*k,4)}, v21 offset:{1024*k}")
    for k in range(4): A(f"ds_read_b128 {v(ZF+16+4*k,4)}, v20 offset:{4096+1024*k}")
    for k in range(4):
        A(f"s_waitcnt lgkmcnt({7-k})")
        A(f"v_mfma_f32_32x32x16_f16 {v(C,16)}, {v(ZF+4*k,4)}, {v(M+4*k,4)}, {'0' if k==0 else v(C,16)}")
    A("s_waitcnt lgkmcnt(0)")
    A("s_cmp_eq_u32 s20, 0")
    A("s_cbranch_scc0 KF_nz")
    A("s_mov_b32 exec_lo, 1")
    A("s_mov_b32 exec_hi, 1")
    for k in range(16): A(f"v_mov_b32 v{ZF+16+k}, 0")
    A("s_mov_b64 exec, -1")
    A("s_nop 1")
    A.label("KF_nz")
    for k in range(4, 8):
        A(f"v_mfma_f32_32x32x16_f16 {v(C,16)}, {v(ZF+4*k,4)}, {v(M+4*k,4)}, {v(C,16)}")
    A("s_or_b32 s39, s21, s36")
    A("s_cmp_eq_u32 s39, 0")
    A("s_cbranch_scc0 KF_nosh")
    A("s_lshl_b32 s39, s37, 7")
    A(f"s_add_u32 s39, s39, {SHL}")
    A("v_lshl_add_u32 v19, v4, 5, s39")
    for q in range(2):
        for z in range(2):
            A(f"ds_read_b128 {v(128+8*q+4*z,4)}, v19 offset:{64*q+16*z}")
    A("s_waitcnt lgkmcnt(0)")
    A("s_mov_b32 exec_lo, 1")
    A("s_mov_b32 exec_hi, 1")
    for k in range(16):
        A(f"v_fmamk_f32 v{C+k}, v{128+k}, {fl(8.0)}, v{C+k}")
    A("s_mov_b64 exec, -1")
    A.label("KF_nosh")
    A("s_nop 8")
    for k in range(16):
        A(f"v_fmac_f32 v{XU+k}, v{GA+k}, v{C+k}")
    for k in range(8):
        A(f"v_cvt_pk_bf16_f32 v{24+k}, v{XU+2*k}, v{XU+2*k+1}")
    A("buffer_store_dwordx4 v[24:27], v13, s[16:19], s45 offen sc1")
    A("buffer_store_dwordx4 v[28:31], v13, s[16:19], s45 offen offset:2048 sc1")
    for k in range(8):
        A(f"v_dot2c_f32_bf16 v10, s59, v{24+k}")
        A(f"v_dot2c_f32_bf16 v11, v{24+k}, v{24+k}")
    A("buffer_store_dwordx2 v[10:11], v12, s[8:11], s47 offen sc1")
    stamp(A, 4)
    A("s_mov_b64 exec, 1")
    A("s_waitcnt vmcnt(0)")
    A("buffer_store_dword v9, v8, s[8:11], s46 offen sc1")
    A("s_mov_b64 exec, -1")
    stamp(A, 5)
    A("s_cmp_eq_u32 s3, 7")
    A("s_cbranch_scc1 KF_w7a")
    A("s_mul_i32 s55, s3, 24576")
    A(f"s_add_u32 s55, s55, {HWL - 4*24576}")
    for i in range(0, E1): hload(i)
    A("s_branch KF_ffn")
    A.label("KF_w7a")
    for i in range(64, 64 + W7E): wload(i)
    A("s_branch KF_ffn")
    A.label("KF_w7poll")
    A("s_lshl_b32 s46, s61, 10")
    A(f"s_add_u32 s46, s46, {FLAG_OFF}")
    A("v_lshlrev_b32 v8, 7, v2")
    A(f"s_mov_b32 s47, {SPIN}")
    A("s_mov_b64 exec, 0xff")
    A.label("KF_poll1")
    A("buffer_load_dwordx4 v[16:19], v8, s[8:11], s46 offen sc1")
    A("s_sub_u32 s47, s47, 1")
    A("s_cbranch_scc1 KF_got1")
    A("s_waitcnt vmcnt(0)")
    A("v_and_b32 v16, v16, v17")
    A("v_and_b32 v18, v18, v19")
    A("v_and_b32 v16, v16, v18")
    A("v_cmp_ne_u32 vcc, 1, v16")
    A("s_cbranch_vccz KF_got1")
    A(f"s_sleep {SL1}")
    A("s_branch KF_poll1")
    A.label("KF_got1")
    A("s_mov_b64 exec, -1")
    A.label("KF_ffn")
    MS = 64
    A("v_lshrrev_b32 v8, 3, v2")
    A("v_and_b32 v9, 7, v2")
    A("v_lshlrev_b32 v10, 5, v8")
    A("s_lshl_b32 s27, s67, 8")
    A(f"s_add_u32 s27, s27, {MOD_OFF + 3*2048}")
    A(f"buffer_load_dwordx4 {v(MS,4)}, v10, s[8:11], s27 offen")
    A(f"buffer_load_dwordx4 {v(MS+4,4)}, v10, s[8:11], s27 offen offset:16")
    A(f"buffer_load_dwordx4 {v(MS+8,4)}, v10, s[8:11], s27 offen offset:2048")
    A(f"buffer_load_dwordx4 {v(MS+12,4)}, v10, s[8:11], s27 offen offset:2064")
    A("v_lshlrev_b32 v6, 10, v8")
    A("v_lshl_add_u32 v6, v9, 4, v6")
    A("s_lshl_b32 s24, s61, 16")
    A("s_lshl_b32 s25, s67, 13")
    A("s_add_u32 s24, s24, s25")
    A("v_lshrrev_b32 v10, 2, v2")
    A("v_lshlrev_b32 v10, 10, v10")
    A("v_and_b32 v11, 3, v2")
    A("v_lshl_add_u32 v10, v11, 4, v10")
    A("s_lshl_b32 s26, s61, 14")
    A("s_bfe_u32 s27, s3, 0x10001")
    A("s_lshl_b32 s27, s27, 9")
    A("s_add_u32 s26, s26, s27")
    A("s_and_b32 s27, s3, 1")
    A("s_lshl_b32 s27, s27, 7")
    A("s_add_u32 s26, s26, s27")
    A(f"s_add_u32 s26, s26, {STS_OFF}")
    A("s_sub_u32 s27, s67, s66")
    A("s_and_b32 s27, s27, 7")
    A("s_lshl_b32 s27, s27, 13")
    A("v_add_u32 v7, s27, v6")
    A("v_bfe_u32 v12, v2, 4, 1")
    A("v_lshl_add_u32 v12, v11, 1, v12")
    A("v_lshl_add_u32 v12, v4, 3, v12")
    A("s_and_b32 s27, s3, 3")
    A("s_lshl_b32 s27, s27, 7")
    A(f"s_add_u32 s27, s27, {STATL}")
    A("v_lshl_add_u32 v12, v12, 3, s27")
    A(f"v_lshlrev_b32 v13, 3, v9")
    A(f"v_add_u32 v13, {STATL}, v13")
    A("s_lshl_b32 s52, s21, 3")
    A("s_add_u32 s52, s52, s70")
    A("s_mul_i32 s53, s52, 28672")
    A("s_lshl_b32 s52, s52, 7")
    A(f"s_add_u32 s52, s52, {FLAG_OFF + F2_REL}")
    stamp(A, 6)
    A("s_barrier")
    stamp(A, 7)
    D = 16; T = 48; RM = 80
    def x1loads():
        for i in range(8):
            A(f"buffer_load_dwordx4 {v(D+4*i,4)}, v6, s[16:19], s24 offen offset:{i*128} sc1")
    A("s_cmp_lt_u32 s3, 4")
    A("s_cbranch_scc0 KF_sth")
    x1loads()
    A("s_branch KF_b3")
    A.label("KF_sth")
    for z in range(2):
        A(f"buffer_load_dwordx4 {v(T+8*z,4)}, v10, s[8:11], s26 offen offset:{64*z} sc1")
        A(f"buffer_load_dwordx4 {v(T+8*z+4,4)}, v10, s[8:11], s26 offen offset:{64*z+256} sc1")
    x1loads()
    A("s_waitcnt vmcnt(8)")
    for z in range(2):
        U = T + 8*z
        A(f"v_pk_add_f32 {v(U,2)}, {v(U,2)}, {v(U+4,2)}")
        A(f"v_pk_add_f32 {v(U+2,2)}, {v(U+2,2)}, {v(U+6,2)}")
    for z in range(2):
        U = T + 8*z
        A(f"v_permlane16_swap_b32 v{U}, v{U+2}")
        A(f"v_permlane16_swap_b32 v{U+1}, v{U+3}")
    for z in range(2):
        U = T + 8*z
        A(f"v_pk_add_f32 {v(U,2)}, {v(U,2)}, {v(U+2,2)}")
    A(f"v_permlane32_swap_b32 v{T}, v{T+8}")
    A(f"v_permlane32_swap_b32 v{T+1}, v{T+9}")
    A(f"v_pk_add_f32 {v(T,2)}, {v(T,2)}, {v(T+8,2)}")
    for m in ("row_ror:4", "row_ror:8"):
        A(f"v_add_f32_dpp v{T}, v{T}, v{T} {m} row_mask:0xf bank_mask:0xf")
        A(f"v_add_f32_dpp v{T+1}, v{T+1}, v{T+1} {m} row_mask:0xf bank_mask:0xf")
    A(f"v_mul_f32 v8, {fl(1/512)}, v{T}")
    A(f"v_mul_f32 v9, {fl(1/512)}, v{T+1}")
    A("v_fma_f32 v9, -v8, v8, v9")
    A("v_max_f32 v9, 0, v9")
    A(f"v_add_f32 v9, {fl(1e-5)}, v9")
    A("v_rsq_f32 v10, v9")
    A("v_mul_f32 v11, -v8, v10")
    A("s_mov_b32 exec_lo, 0x000f000f")
    A("s_mov_b32 exec_hi, 0x000f000f")
    A("ds_write_b64 v12, v[10:11]")
    A("s_mov_b64 exec, -1")
    A("s_waitcnt lgkmcnt(0)")
    A.label("KF_b3")
    A("s_barrier")
    stamp(A, 8)
    for i in range(8): A(f"ds_read_b64 {v(RM+2*i,2)}, v13 offset:{64*i}")
    for i in range(8):
        A(f"s_waitcnt vmcnt({7-i}) lgkmcnt(7)")
        for j in range(4):
            r = D + 4*i + j
            t = T + 2*j
            A(f"v_lshlrev_b32 v{t}, 16, v{r}")
            A(f"v_and_b32 v{t+1}, s58, v{r}")
            A(f"v_pk_fma_f32 {v(t,2)}, {v(t,2)}, {v(RM+2*i,2)}, {v(RM+2*i,2)} op_sel:[0,0,1] op_sel_hi:[1,0,1]")
            A(f"v_pk_fma_f32 {v(t,2)}, {v(t,2)}, {v(MS+8+2*j,2)}, {v(MS+2*j,2)}")
            A(f"v_cvt_pk_bf16_f32 v{r}, v{t}, v{t+1}")
        A(f"ds_write_b128 v7, {v(D+4*i,4)} offset:{i*128}")
    A("v_lshlrev_b32 v7, 10, v4")
    A("v_lshl_add_u32 v7, v3, 4, v7")
    A("v_mov_b32 v8, 0")
    C = 16; B = 80
    def brd(ks):
        A(f"ds_read_b128 {v(B+8*(ks&1),4)}, v7 offset:{ks*2048}")
        A(f"ds_read_b128 {v(B+8*(ks&1)+4,4)}, v7 offset:{ks*2048+512}")
    def mf(ks, after=None):
        for mat, nt in ((0,0),(0,1),(1,1),(1,0)):
            c = C + 32*mat + 16*nt
            A(f"v_mfma_f32_32x32x16_bf16 {v(c,16)}, {v(R+4*((2*ks+mat)%RING),4)}, {v(B+8*(ks&1)+4*nt,4)}, {'0' if ks==0 else v(c,16)}")
            if mat + nt == 1 and after: after(mat)
    A("s_cmp_lt_u32 s3, 4")
    A("s_cbranch_scc0 KF_pah")
    A(f"ds_write_b32 v8, v8 offset:{GOL}" if False else "s_nop 0")
    A("s_waitcnt lgkmcnt(0)")
    A("s_barrier")
    stamp(A, 9)
    A("s_setprio 2")
    brd(0)
    st = {"n": LO1}
    for ks in range(32):
        if ks + 1 < 32: brd(ks + 1)
        need = 2*ks + 2
        vm = f"vmcnt({st['n'] - need}) " if need > LO1 else ""
        A(f"s_waitcnt {vm}lgkmcnt({2 if ks+1 < 32 else 0})")
        def after(mat):
            lim = min(NF if ks >= WDK else 64, 2*ks + mat + RING + 1)
            k = 0
            while st["n"] < lim and k < 2: wload(st["n"]); st["n"] += 1; k += 1
        mf(ks, after)
    stamp(A, 10)
    A("s_setprio 0")
    A("s_mov_b32 s54, 0")
    while st["n"] < NF: wload(st["n"]); st["n"] += 1
    A("s_branch KF_gelu")
    A.label("KF_pah")
    A("s_cmp_eq_u32 s3, 7")
    A("s_cbranch_scc1 KF_w7b")
    for i in range(E1, N1): hload(i)
    A("s_waitcnt lgkmcnt(0)")
    A("s_barrier")
    stamp(A, 9)
    for i in range(N1, 64):
        hload(i)
        if (i & 3) == 3 and PACE: A(f"s_waitcnt vmcnt({PACE})")
    A("v_add_u32 v6, s55, v5")
    brd(0)
    A("s_waitcnt vmcnt(0)")
    stamp(A, 4)
    st = {"n": 64}
    for ks in range(32):
        nr = 0
        if ks + 1 < 32:
            brd(ks + 1); nr = 2
            if 2*(ks + 1) >= RING:
                for mat in range(2):
                    i = 2*(ks + 1) + mat
                    A(f"ds_read_b128 {v(R+4*(i%RING),4)}, v6 offset:{(i-RING)*1024}")
                nr = 4
        A(f"s_waitcnt lgkmcnt({nr})")
        def after(mat):
            if ks >= HWK and st["n"] < 80: wload(st["n"]); st["n"] += 1
        mf(ks, after)
        if ks == 28: A("buffer_load_dwordx4 v[12:15], v8, s[8:11], s52 offen sc1")
    stamp(A, 10)
    HN = st["n"]
    AR = [144 + 4*k for k in range(12)] + [80 + 4*k for k in range(4)]
    def check(tag, off, regs):
        A(f"s_mov_b32 s47, {SPIN}")
        A(f"s_branch KF_chk{tag}")
        A.label(f"KF_poll{tag}")
        A(f"s_sleep {SL2}")
        A(f"buffer_load_dwordx4 v[12:15], v8, s[8:11], s52 offen offset:{off} sc1")
        A("s_sub_u32 s47, s47, 1")
        A(f"s_cbranch_scc1 KF_got{tag}")
        A.label(f"KF_chk{tag}")
        A("s_waitcnt vmcnt(0)")
        A("v_and_b32 v12, v12, v13")
        if regs == 4: A("v_and_b32 v14, v14, v15")
        A("v_and_b32 v12, v12, v14")
        A("v_cmp_ne_u32 vcc, 1, v12")
        A(f"s_cbranch_vccnz KF_poll{tag}")
        A.label(f"KF_got{tag}")
    def aloads(f0, lo, hi):
        for idx in range(lo, hi):
            if idx % 4 == 0: A(f"s_add_u32 s30, s53, {(f0 + idx) * 1024}")
            A(f"buffer_load_dwordx4 {v(AR[idx],4)}, v5, s[48:51], s30 offen offset:{(idx%4)*1024} sc1")
    A("s_mov_b32 s54, 0")
    if PRE:
        A("s_waitcnt vmcnt(0)")
        A("v_and_b32 v12, v12, v13")
        A("v_and_b32 v14, v14, v15")
        A("v_and_b32 v12, v12, v14")
        A("v_cmp_ne_u32 vcc, 1, v12")
        A("s_cbranch_vccnz KF_gelu")
        A("s_mov_b32 s54, 1")
        aloads(0, 0, 12)
    A.label("KF_gelu")
    c0 = -2.0 * math.sqrt(2.0 / math.pi) * math.log2(math.e)
    A(f"s_mov_b32 s32, {fl(c0 * 0.044715)}")
    A(f"v_mov_b32 v11, {fl(c0)}")
    A("s_lshl_b32 s46, s61, 3")
    A("s_add_u32 s46, s46, s60")
    A("s_mul_i32 s29, s46, 28672")
    A("s_lshl_b32 s30, s3, 12")
    A("s_add_u32 s29, s29, s30")
    A("s_nop 4")
    for nt in (1, 0):
        for q in range(2):
            g0 = C + 16*nt + 8*q; u0 = g0 + 32; t0 = B
            for k in range(8): A(f"v_mul_f32 v{t0+k}, v{g0+k}, v{g0+k}")
            for k in range(8): A(f"v_fma_f32 v{t0+k}, v{t0+k}, s32, v11")
            for k in range(8): A(f"v_mul_f32 v{t0+k}, v{t0+k}, v{g0+k}")
            for k in range(8): A(f"v_exp_f32 v{t0+k}, v{t0+k}")
            for k in range(8): A(f"v_mul_f32 v{u0+k}, v{u0+k}, v{g0+k}")
            for k in range(8): A(f"v_add_f32 v{t0+k}, 1.0, v{t0+k}")
            for k in range(8): A(f"v_rcp_f32 v{t0+k}, v{t0+k}")
            for k in range(8): A(f"v_mul_f32 v{u0+k}, v{u0+k}, v{t0+k}")
            for k in range(4): A(f"v_cvt_pk_bf16_f32 v{g0+k}, v{u0+2*k}, v{u0+2*k+1}")
            A(f"buffer_store_dwordx4 {v(g0,4)}, v5, s[48:51], s29 offen offset:{(q*2+nt)*1024} sc1")
    A("s_lshl_b32 s46, s46, 7")
    A("s_lshl_b32 s47, s3, 2")
    A("s_add_u32 s46, s46, s47")
    A(f"s_add_u32 s46, s46, {FLAG_OFF + F2_REL}")
    A("v_mov_b32 v9, 1")
    stamp(A, 11)
    A("buffer_load_dwordx4 v[12:15], v8, s[8:11], s52 offen sc1")
    A("s_mov_b64 exec, 1")
    A("s_waitcnt vmcnt(0)")
    A("buffer_store_dword v9, v8, s[8:11], s46 offen sc1")
    A("s_mov_b64 exec, -1")
    A("s_setprio 0")
    stamp(A, 12)
    A("s_cmp_lt_u32 s3, 4")
    A("s_cbranch_scc0 KF_hw")
    A(f"v_mov_b32 v10, {GOL}")
    A("ds_write_b32 v10, v9")
    A("s_branch KF_pl")
    A.label("KF_hw")
    A("s_barrier")
    A("v_and_b32 v12, v12, v13")
    A("v_and_b32 v14, v14, v15")
    A("v_and_b32 v12, v12, v14")
    A("v_mov_b32 v13, v12\nv_mov_b32 v14, v12\nv_mov_b32 v15, v12")
    for i in range(HN, NF): wload(i)
    A("s_cmp_eq_u32 s54, 1")
    A("s_cbranch_scc1 KF_pb")
    A("v_cmp_ne_u32 vcc, 1, v12")
    A("s_cbranch_vccz KF_got2l")
    A("s_branch KF_pl")
    A.label("KF_w7b")
    A("s_setprio 0")
    A(f"v_mov_b32 v10, {GOL}")
    A("ds_write_b32 v10, v8")
    for i in range(64 + W7E, 64 + W7N): wload(i)
    A("s_waitcnt lgkmcnt(0)")
    A("s_barrier")
    stamp(A, 9)
    for i in range(64 + W7N, NF): wload(i)
    A(f"s_mov_b32 s47, {SPIN}")
    A.label("KF_w7s")
    A("s_sleep 4")
    A("ds_read_b32 v11, v10")
    A("s_sub_u32 s47, s47, 1")
    A("s_cbranch_scc1 KF_w7g")
    A("s_waitcnt lgkmcnt(0)")
    A("v_cmp_ne_u32 vcc, 1, v11")
    A("s_cbranch_vccnz KF_w7s")
    A.label("KF_w7g")
    A("buffer_load_dwordx4 v[12:15], v8, s[8:11], s52 offen sc1")
    A.label("KF_pl")
    check("2l", 0, 4)
    aloads(0, 0, 12)
    A.label("KF_pb")
    stamp(A, 13)
    aloads(0, 12, 16)
    A("buffer_load_dwordx4 v[12:15], v8, s[8:11], s52 offen offset:16 sc1")
    def mm(kks, first, n_young):
        for ik, kk in enumerate(kks):
            A(f"s_waitcnt vmcnt({2*len(kks) - 2*ik - 2 + n_young})")
            for t, nt in ((0,0),(0,1),(1,1),(1,0)):
                c = C + 32*t + 16*nt
                A(f"v_mfma_f32_32x32x16_bf16 {v(c,16)}, {v(R+4*((64+2*kk+t)%RING),4)}, {v(AR[2*ik+nt],4)}, {'0' if (first and ik==0) else v(c,16)}")
    mm(list(range(0, 8)), True, 1)
    stamp(A, 14)
    A("s_sub_u32 s27, s3, 4")
    A("s_cmp_lt_u32 s27, 3")
    A("s_cbranch_scc1 KF_nobx")
    A("s_barrier")
    A("buffer_load_dwordx4 v[12:15], v8, s[8:11], s52 offen offset:16 sc1")
    A.label("KF_nobx")
    check("3", 16, 3)
    stamp(A, 15)
    aloads(16, 0, 12)
    def extra():
        A("v_and_b32 v9, 7, v0")
        A("v_lshrrev_b32 v10, 3, v0")
        A("s_lshl_b32 s31, s20, 3")
        A("v_add_u32 v11, s31, v9")
        A("v_lshlrev_b32 v6, 5, v11")
        A(f"s_mov_b32 s32, {MOD_OFF + 5*2048}")
        A("buffer_load_dwordx4 v[88:91], v6, s[8:11], s32 offen")
        A("buffer_load_dwordx4 v[92:95], v6, s[8:11], s32 offen offset:16")
        A("v_sub_u32 v12, 63, v11")
        A("s_cmp_lt_u32 s20, 4")
        A("s_cselect_b64 vcc, -1, 0")
        A("s_cselect_b32 s33, 0, 4")
        A("s_cselect_b32 s34, 0x05040c0c, 0x01000c0c" if False else "s_mov_b32 s34, 0x01000c0c")
        A("s_cselect_b32 s34, 0x05040c0c, s34")
        A("s_add_u32 s35, s34, 0x02020000")
        A("v_cndmask_b32 v12, v12, v11, vcc")
        A("v_lshrrev_b32 v13, 2, v12")
        A("v_and_b32 v12, 3, v12")
        A("v_lshl_add_u32 v12, v13, 3, v12")
        A("v_add_u32 v12, s33, v12")
        A("v_lshlrev_b32 v12, 10, v12")
        A("v_lshl_add_u32 v12, v10, 4, v12")
        A("v_sub_u32 v13, 64, v11")
        A("v_and_b32 v13, 31, v13")
        A("v_lshrrev_b32 v14, 2, v13")
        A("v_and_b32 v13, 3, v13")
        A("v_lshl_add_u32 v13, v14, 3, v13")
        A("v_add_u32 v13, 4, v13")
        A("v_lshlrev_b32 v13, 10, v13")
        A("v_lshl_add_u32 v13, v10, 4, v13")
        A("s_lshl_b32 s31, s21, 16")
        A("buffer_load_dwordx4 v[80:83], v12, s[16:19], s31 offen sc1")
        A("buffer_load_ushort v84, v13, s[16:19], s31 offen sc1")
        A("v_and_b32 v12, 31, v10")
        A("v_lshlrev_b32 v12, 6, v12")
        A("v_add_u32 v12, s21, v12")
        A("v_add_u32 v13, 32, v12")
        A("v_sub_u32 v14, 0x800, v12")
        A("s_cmp_eq_u32 s21, 0")
        A("s_cselect_b64 vcc, -1, 0")
        A("v_cndmask_b32 v13, v14, v13, vcc")
        A("s_cmp_lt_u32 s3, 4")
        A("s_cselect_b64 vcc, -1, 0")
        A("v_cndmask_b32 v12, v13, v12, vcc")
        A("v_lshlrev_b32 v12, 10, v12")
        A("v_lshl_add_u32 v11, v11, 4, v12")
        srd(A, 40, 68, 0x200000)
        A(f"v_mul_u32_u24 v12, {4*RCH}, v4")
        A("v_lshl_add_u32 v12, v3, 4, v12")
        A(f"s_mul_i32 s31, s3, {RSRC}")
        A(f"s_add_u32 s31, s31, {REDL}")
        A("v_add_u32 v12, s31, v12")
        A(f"v_mul_u32_u24 v13, {RCH}, v9")
        A("v_lshl_add_u32 v13, v10, 4, v13")
        A(f"v_add_u32 v13, {REDL}, v13")
        return 4
    mm(list(range(8, 14)), False, extra())
    stamp(A, 16)
    PK = 192
    for nt in (1, 0):
        for jj in range(4):
            p = PK + 16*nt + 4*jj
            for t in range(2):
                c = C + 32*t + 16*nt
                A(f"v_cvt_pk_bf16_f32 v{p+2*t}, v{c+jj}, v{c+4+jj}")
                A(f"v_cvt_pk_bf16_f32 v{p+2*t+1}, v{c+8+jj}, v{c+12+jj}")
            A(f"ds_write_b128 v12, {v(p,4)} offset:{jj*RCH + nt*512}")
    XO = 224
    A("s_waitcnt vmcnt(0)")
    for k in range(8):
        mir = "v84" if k == 0 else f"v{80 + ((8-k) >> 1)}"
        A(f"v_perm_b32 v{XO+k}, v{80 + (k >> 1)}, {mir}, {'s34' if k % 2 == 0 else 's35'}")
    A("s_waitcnt lgkmcnt(0)")
    A("s_barrier")
    stamp(A, 17)
    D = 16; AC = 64
    for i in range(8): A(f"ds_read_b128 {v(D+4*i,4)}, v13 offset:{i*RSRC}")
    for i in range(8):
        A(f"s_waitcnt lgkmcnt({7-i})")
        for j in range(4):
            r = D + 4*i + j
            if i == 0:
                A(f"v_lshlrev_b32 v{AC+2*j}, 16, v{r}")
                A(f"v_and_b32 v{AC+2*j+1}, s58, v{r}")
            else:
                t = 72 + 2*(j & 1)
                A(f"v_lshlrev_b32 v{t}, 16, v{r}")
                A(f"v_and_b32 v{t+1}, s58, v{r}")
                A(f"v_pk_add_f32 {v(AC+2*j,2)}, {v(AC+2*j,2)}, {v(t,2)}")
    for k in range(8): A(f"v_fmac_f32 v{XO+k}, v{88+k}, v{AC+k}")
    for k in range(4): A(f"v_cvt_pk_bf16_f32 v{48+k}, v{XO+2*k}, v{XO+2*k+1}")
    A("buffer_store_dwordx4 v[48:51], v11, s[40:43], 0 offen")
    if STAMPS: A("s_waitcnt vmcnt(0)")
    stamp_flush(A, 1, 20)
    A.label("KF_end")
    A("s_endpgm")
    A.label("KF_code_end")
    return A
```

```python
import sys
from gen_common import *
from gen_k1 import *
from gen_kf import *
REF = open("adaLN_cond__spectral_fnet__geglu_ffn__prompt.s.ref").read().split("\n")
hdr = [l for l in REF if l.startswith(";") and "@launch" not in l and "Override" not in l and "grid=ceil" not in l]
pf = ("kf_kernel", "KF_code_end-kf_kernel") if os.environ.get("PF", "1") == "1" else None
kernels = [("k1_kernel", gen_k1(pf), K1_GRID, 512, K1_LDS, K1_VGPR), ("kf_kernel", gen_kf(), 256, 512, KF_LDS, 256)]
out = "\n".join(hdr) + "\n"
for n, A, g, b, lds, vg in kernels:
    out += f"; @launch kernel={n} grid=({g},1,1) block=({b},1,1) lds={lds}\n"
out += '.amdgcn_target "amdgcn-amd-amdhsa--gfx950"\n.text\n'
for n, A, g, b, lds, vg in kernels:
    out += kern_head(n) + A.render()
out += '.section .rodata,"a"\n'
for n, A, g, b, lds, vg in kernels:
    out += kern_desc(n, vg)
path = sys.argv[1] if len(sys.argv) > 1 else "k.s"
open(path, "w").write(out)
print("wrote", path, len(out))
```

```python
from asmlib import *
import struct, os
def fl(x): return "0x%08x" % struct.unpack("<I", struct.pack("<f", x))[0]

SLAB_OFF = 0
MOD_OFF  = 0x200000
SHP_OFF  = 0x204000
FLAG_OFF = 0x210000
F2_REL   = 0x8000
F3_REL   = 0x10000
FLAG_BYTES = 0x10000
STS_OFF  = 0x280000
LOW_BYTES = 0x300000
WQ_OFF   = 0x400000
WQ_CHUNK = 688128
WQ_P2    = 458752
WQC      = 229376
WQD      = 16 * WQC
WQ_BYTES = 24 * WQC
X1_OFF   = 0xA00000
H2_REL   = 0x200000
ACT_OFF  = 0xE00000
ACT_BYTES = 256 * 28672

def srd(A, d, base, nbytes, add=0):
    if add:
        A(f"s_add_u32 s{d}, s{base}, {hex(add)}")
        A(f"s_addc_u32 s{d+1}, s{base+1}, 0")
    else:
        A(f"s_mov_b32 s{d}, s{base}")
        A(f"s_mov_b32 s{d+1}, s{base+1}")
    A(f"s_mov_b32 s{d+2}, {hex(nbytes)}")
    A(f"s_mov_b32 s{d+3}, 0x20000")

def kern_head(name):
    return f".globl {name}\n.p2align 8\n.type {name},@function\n{name}:\n"

def kern_desc(name, vgpr, sgpr=102, accum=None):
    accum = accum or ((vgpr + 3) // 4 * 4)
    return f""".p2align 6
.amdhsa_kernel {name}
  .amdhsa_next_free_vgpr {vgpr}
  .amdhsa_next_free_sgpr {sgpr}
  .amdhsa_accum_offset {accum}
  .amdhsa_group_segment_fixed_size 0
  .amdhsa_kernarg_size 112
  .amdhsa_user_sgpr_count 2
  .amdhsa_user_sgpr_kernarg_segment_ptr 1
  .amdhsa_system_sgpr_workgroup_id_x 1
.end_amdhsa_kernel
"""

STAMPS = int(os.environ.get("STAMPS", "0"))
STAMP_OFF = 0x8000000
ST0 = 72
def stamp(A, k, force=False):
    if STAMPS == 1 or (STAMPS and (k == 0 or force)):
        A("s_memtime s[94:95]" if os.environ.get("STCLK") else "s_memrealtime s[94:95]")
        A("s_waitcnt lgkmcnt(0)")
        A(f"s_mov_b32 s{ST0+k}, s94")
def stamp_init(A, n):
    if STAMPS:
        for k in range(n): A(f"s_mov_b32 s{ST0+k}, 0")
def stamp_flush(A, kern, n, tid="v0"):
    if not STAMPS: return
    stamp(A, n - 1, True)
    A("s_mov_b64 exec, -1")
    srd(A, 96, 4, 0x1000000, STAMP_OFF + kern * 0x100000)
    A(f"v_lshrrev_b32 v1, 6, {tid}")
    A("v_lshlrev_b32 v1, 7, v1")
    A("s_lshl_b32 s94, s2, 10")
    A("s_mov_b64 exec, 1")
    for k in range(n):
        A(f"v_mov_b32 v2, s{ST0+k}")
        A(f"buffer_store_dword v2, v1, s[96:99], s94 offen offset:{4*k}")
```

```python
from gen_common import *
from gen_p0 import phase0, sidejob
import math

MATL = 65536
ZL = 131072
SHL = ZL + 8192
STATL = SHL + 256
GOL = STATL + 1024
PSTL = GOL + 64
KC_LDS = PSTL + 8192
REDL = 65536; RCH = 1056; RSRC = 8 * RCH
W = 128
E = lambda k, d: int(os.environ.get(k, str(d)))
W0 = E("W0", 4)
LG = E("LG", 8)
HG = E("HG", 16)
W7E = E("W7E", 8)
PK_ = E("PK", 18)
N2PRE = E("N2PRE", 0)
TCH = 0
BPB = E("BPB", 0)
LDL = 0
LWE = E("LWE", 0)
SLG = E("SLG", 2)
HW1 = E("HW1", 8)
SDL = E("SDL", 1)
H2B = E("H2B", 1)
HK = E("HK", 7)
SL1 = E("SL1", 2); SL2 = E("SL2", 4)
SPIN = 100000

def gen_km():
    A = Asm()
    A("s_cmp_ge_u32 s2, 256")
    A("s_cbranch_scc1 KC_end")
    stamp_init(A, 22); stamp(A, 0)
    phase0(A)
    stamp(A, 17)
    if int(os.environ.get("P0ST", "0")):
        stamp_flush(A, 0, 22)
        A("s_endpgm")
    A("s_mov_b64 s[50:51], s[66:67]")
    A("s_load_dwordx2 s[4:5], s[0:1], 104")
    A("s_load_dwordx2 s[6:7], s[0:1], 0")
    A("s_load_dwordx2 s[68:69], s[0:1], 88")
    A("v_lshrrev_b32 v1, 6, v0")
    A("v_readfirstlane_b32 s3, v1")
    A("s_bfe_u32 s20, s2, 0x30003")
    A("s_and_b32 s21, s2, 7")
    A("s_lshl_b32 s21, s21, 2")
    A("s_lshr_b32 s22, s2, 6")
    A("s_add_u32 s21, s21, s22")
    A("v_and_b32 v2, 63, v0")
    A("v_and_b32 v3, 31, v2")
    A("v_lshrrev_b32 v4, 5, v2")
    A("v_lshlrev_b32 v5, 4, v2")
    A("v_lshlrev_b32 v6, 5, v2")
    A("s_add_u32 s70, s3, s20")
    A("s_and_b32 s70, s70, 7")
    A("s_lshl_b32 s25, s3, 13")
    A("s_lshl_b32 s26, s70, 13")
    CA = 64; X = 72; Y = 80
    A("s_and_b32 s22, s70, 1")
    A("s_lshl_b32 s22, s22, 3")
    for i in range(8):
        A(f"s_add_u32 s24, s22, {i}")
        A(f"v_xor_b32 v{Y+i}, s24, v2")
        A(f"v_lshlrev_b32 v{Y+i}, 4, v{Y+i}")
    A("s_lshl_b32 s24, s21, 16")
    A("s_add_u32 s24, s24, s26")
    A(f"s_mov_b32 s27, {MOD_OFF + 2048}")
    A("s_mov_b32 m0, s26")
    def dma_issue():
        A("s_waitcnt lgkmcnt(0)")
        srd(A, 8, 4, LOW_BYTES, 0)
        A(f"buffer_load_dwordx4 {v(CA,4)}, v6, s[8:11], s27 offen")
        A(f"buffer_load_dwordx4 {v(CA+4,4)}, v6, s[8:11], s27 offen offset:16")
        for i in range(4):
            A(f"buffer_load_dwordx4 v{Y+i}, s[8:11], s24 offen offset:{i*1024} lds")
        A("s_add_u32 s24, s24, 4096")
        A("s_add_u32 m0, s26, 4096")
        for i in range(4, 8):
            A(f"buffer_load_dwordx4 v{Y+i}, s[8:11], s24 offen offset:{(i&3)*1024} lds")
    def gowait(tag, off):
        A(f"s_mov_b32 s47, {SPIN}")
        A("v_mov_b32 v12, 0")
        A.label(f"KC_gw{tag}")
        A(f"global_load_dword v13, v12, s[50:51] offset:{128 + off} sc1")
        A("s_waitcnt vmcnt(0)")
        A("v_cmp_eq_u32 vcc, 1, v13")
        A(f"s_cbranch_vccnz KC_gg{tag}")
        if SLG: A(f"s_sleep {SLG}")
        A("s_sub_u32 s47, s47, 1")
        A(f"s_cbranch_scc0 KC_gw{tag}")
        A.label(f"KC_gg{tag}")
    G = 32; GX = 56; P = 88; DK = 24; K2 = 16
    Gr = lambda i: G + 8*(i % 3)
    A("v_lshlrev_b32 v8, 3, v2")
    A("v_cvt_f32_u32 v8, v8")
    A(f"v_mul_f32 v{DK}, {fl(1/512)}, v8")
    for k in range(1, 8): A(f"v_add_f32 v{DK+k}, {fl(k/512)}, v{DK}")
    A("s_and_b32 s28, s3, 3")
    A("s_lshl_b32 s28, s28, 3")
    A("s_lshl_b32 s29, s20, 5")
    A("s_add_u32 s28, s28, s29")
    A("s_cmp_lt_u32 s3, 4")
    A(f"s_cselect_b32 s29, 0, {fl(0.25)}")
    A("s_lshl_b32 s30, s20, 3")
    A("s_add_u32 s30, s30, s3")
    A("s_cmp_eq_u32 s30, 4")
    A("s_cselect_b32 s31, 0x100, s28")
    A("s_cselect_b32 s32, 0, s29")
    A("v_cvt_f32_u32 v9, s31")
    A("v_cvt_f32_u32 v10, s28")
    for k in range(8): A(f"v_cos_f32 v{K2+k}, v{DK+k}")
    for k in range(8): A(f"v_fma_f32 v{GX+k}, v{DK+k}, v9, s32")
    for k in range(8): A(f"v_fma_f32 v{G+k}, v{DK+k}, v10, s29")
    for k in range(8): A(f"v_add_f32 v{G+8+k}, v{G+k}, v{DK+k}")
    for k in range(8): A(f"v_cos_f32 v{GX+k}, v{GX+k}")
    for k in range(16): A(f"v_cos_f32 v{G+k}, v{G+k}")
    for k in range(8): A(f"v_add_f32 v{K2+k}, v{K2+k}, v{K2+k}")
    XD = 120; GA = 104; XS = 14
    A("s_and_b32 s36, s3, 1")
    A("s_bfe_u32 s37, s3, 0x10001")
    A("s_cmp_lt_u32 s3, 4")
    A("s_cbranch_scc1 KC_noxl")
    A("s_waitcnt lgkmcnt(0)")
    A("v_lshlrev_b32 v7, 6, v3")
    A("v_add_u32 v7, s21, v7")
    A("s_cmp_eq_u32 s36, 0")
    A("s_cbranch_scc1 KC_tok_done")
    A("v_add_u32 v8, 32, v7")
    A("v_sub_u32 v7, 0x800, v7")
    A("s_cmp_eq_u32 s21, 0")
    A("s_cselect_b64 vcc, -1, 0")
    A("v_cndmask_b32 v7, v7, v8, vcc")
    A.label("KC_tok_done")
    srd(A, 40, 6, 0x200000)
    A("v_lshlrev_b32 v8, 10, v7")
    A("s_lshl_b32 s38, s20, 6")
    A("v_lshl_add_u32 v9, v4, 4, s38")
    A("v_sub_u32 v10, 1008, v9")
    A("s_cmp_eq_u32 s37, 0")
    A("s_cselect_b64 vcc, -1, 0")
    A("s_cselect_b32 s44, 32, -32")
    A("v_cndmask_b32 v10, v10, v9, vcc")
    A("v_add_u32 v10, v8, v10")
    A("v_add_u32 v11, s44, v10")
    A(f"buffer_load_dwordx4 {v(XD,4)}, v10, s[40:43], 0 offen")
    A(f"buffer_load_dwordx4 {v(XD+4,4)}, v11, s[40:43], 0 offen")
    A(f"buffer_load_ushort v{XS+1}, v11, s[40:43], 0 offen offset:16")
    A("v_sub_u32 v11, 0x400, v9")
    A("v_cmp_eq_u32 vcc, 0, v9")
    A("v_mov_b32 v12, 0x200")
    A("s_lshl_b32 s39, s20, 8")
    A("v_cndmask_b32 v11, v11, v12, vcc")
    A("v_add_u32 v11, v8, v11")
    A(f"buffer_load_ushort v{XS}, v11, s[40:43], 0 offen")
    A.label("KC_noxl")
    A("s_and_b32 s22, s3, 1")
    A("s_lshl_b32 s22, s22, 3")
    A(f"s_add_u32 s30, s25, {MATL}")
    for i in range(8):
        A(f"s_add_u32 s24, s22, {i}")
        A(f"v_xor_b32 v{X+i}, s24, v2")
        A(f"v_lshl_add_u32 v{X+i}, v{X+i}, 4, s30")
    A("s_lshl_b32 s24, s21, 16")
    A("s_add_u32 s24, s24, s26")
    A("s_waitcnt lgkmcnt(0)")
    sidejob(A)
    stamp(A, 16)
    A("s_cmp_eq_u32 s3, 0")
    A("s_cbranch_scc0 KC_b0")
    gowait("1", 0)
    A.label("KC_b0")
    A("s_barrier")
    stamp(A, 19)
    dma_issue()
    A(f"v_mov_b32 v12, {GOL}")
    A("v_mov_b32 v128, 0\nv_mov_b32 v129, 0\nv_mov_b32 v130, 0\nv_mov_b32 v131, 0")
    A("ds_write_b128 v12, v[128:131]")
    A("ds_write_b128 v12, v[128:131] offset:16")
    A("s_waitcnt vmcnt(8)")
    A("s_barrier")
    A("s_cmp_eq_u32 s3, 0")
    A("s_cbranch_scc0 KC_nodw")
    A("s_cmp_lt_u32 s2, 64")
    A("s_cbranch_scc1 KC_nodw")
    A("s_and_b32 s46, s2, 15")
    A("s_lshl_b32 s46, s46, 7")
    A("s_lshr_b32 s47, s2, 4")
    A("s_lshl_b32 s47, s47, 2")
    A("s_add_u32 s46, s46, s47")
    A(f"s_add_u32 s46, s46, {FLAG_OFF + F3_REL - 16}")
    A("v_mov_b32 v12, 0")
    A("v_mov_b32 v13, 1")
    A("s_mov_b64 exec, 1")
    A("buffer_store_dword v13, v12, s[8:11], s46 offen sc1")
    A("s_mov_b64 exec, -1")
    A.label("KC_nodw")
    for base in (GX, G, G + 8):
        for j in range(4): A(f"v_pk_mul_f32 {v(base+2*j,2)}, {v(base+2*j,2)}, {v(CA+2*j,2)}")
    PP = [88, 92, 96, 100]
    for i in range(8):
        if i >= 2:
            for j in range(4):
                A(f"v_pk_fma_f32 {v(Gr(i)+2*j,2)}, {v(K2+2*j,2)}, {v(Gr(i-1)+2*j,2)}, {v(Gr(i-2)+2*j,2)} neg_lo:[0,0,1] neg_hi:[0,0,1]")
        src = GX if i == 0 else Gr(i)
        if i >= 4: A("s_waitcnt lgkmcnt(3)")
        for j in range(4): A(f"v_cvt_pk_f16_f32 v{PP[i&3]+j}, v{src+2*j}, v{src+2*j+1}")
        A(f"ds_write_b128 v{X+i}, {v(PP[i&3],4)} offset:{i*1024}")
    A("s_and_b32 s60, s2, 3")
    A("s_lshl_b32 s60, s60, 2")
    A("s_bfe_u32 s22, s2, 0x20003")
    A("s_add_u32 s60, s60, s22")
    A("s_lshr_b32 s66, s2, 5")
    A("s_bfe_u32 s61, s2, 0x10002")
    A("s_lshl_b32 s61, s61, 3")
    A("s_add_u32 s61, s61, s66")
    A("s_lshl_b32 s61, s61, 1")
    A("s_and_b32 s22, s60, 1")
    A("s_add_u32 s61, s61, s22")
    srd(A, 12, 4, WQ_BYTES, WQ_OFF)
    srd(A, 16, 4, 0x400000, X1_OFF)
    A(f"s_mul_i32 s62, s60, {WQC}")
    A("s_lshl_b32 s22, s3, 15")
    A("s_add_u32 s62, s62, s22")
    A("s_lshl_b32 s63, s66, 12")
    A("s_add_u32 s64, s62, s63")
    A("s_and_b32 s67, s60, 2")
    A("s_lshl_b32 s67, s67, 1")
    A("s_add_u32 s67, s67, s3")
    A("s_and_b32 s67, s67, 7")
    A("s_lshl_b32 s22, s21, 1")
    A("s_add_u32 s70, s70, s22")
    A("s_and_b32 s70, s70, 7")
    A(f"s_mul_i32 s65, s70, {WQC}")
    A("s_mul_i32 s22, s20, 28672")
    A("s_add_u32 s65, s65, s22")
    A(f"s_add_u32 s65, s65, {WQD}")
    A("s_mov_b32 s58, 0xffff0000")
    A("s_mov_b32 s59, 0x3f803f80")
    def wload(i):
        A(f"buffer_load_dwordx4 {v(W+4*i,4)}, v5, s[12:15], s64 offen offset:{(i&3)*1024}")
        if (i & 3) == 3 and i < 31:
            A("s_add_u32 s63, s63, 4096")
            A("s_and_b32 s63, s63, 0x7fff")
            A("s_add_u32 s64, s62, s63")
    DRQ = [16, 20, 24, 28, 32, 36, 40, 44, 48, 52, 56, 60, 88, 92, 80, 84,
           64, 68, 72, 76, 96, 100, 104, 108, 112, 116, 120, 124]
    DR = lambda lam, t: DRQ[2*lam + t]
    def dload(lam, lds=None, base="s65"):
        ft = lam % 7; vo = "v14" if lam < 7 else "v15"
        A(f"s_add_u32 s71, {base}, {ft*4096}")
        if lds is not None: A(f"s_add_u32 m0, s55, {lds}")
        for t in range(2):
            if lds is None: A(f"buffer_load_dwordx4 {v(DR(lam,t),4)}, {vo}, s[12:15], s71 offen offset:{t*1024}")
            else: A(f"buffer_load_dwordx4 {vo}, s[12:15], s71 offen offset:{t*1024} lds")
    def ldswait(tag, off, val):
        A(f"s_mov_b32 s47, {SPIN}")
        A.label(f"KC_ls{tag}")
        A(f"ds_read_b32 v12, v10 offset:{off}")
        A("s_sub_u32 s47, s47, 1")
        A(f"s_cbranch_scc1 KC_lg{tag}")
        A("s_waitcnt lgkmcnt(0)")
        A(f"v_cmp_le_u32 vcc, {val}, v12")
        A(f"s_cbranch_vccnz KC_lg{tag}")
        A("s_sleep 1")
        A(f"s_branch KC_ls{tag}")
        A.label(f"KC_lg{tag}")
    def side_addr():
        A("s_and_b32 s22, s21, 1")
        A("s_lshl_b32 s22, s22, 11")
        A("v_add_u32 v14, s22, v5")
        A("v_xor_b32 v15, 0x800, v14")
    stamp(A, 1)
    A("s_cmp_ge_u32 s3, 4")
    A("s_cbranch_scc1 KC_hi")
    AB, BB = 112, 120
    A("v_and_b32 v14, 15, v3")
    A("v_lshlrev_b32 v15, 10, v3")
    A("s_lshl_b32 s46, s36, 15")
    A("v_add_u32 v15, s46, v15")
    A("v_and_b32 v16, 19, v3")
    A("v_bfe_u32 v17, v3, 2, 1")
    A("v_lshl_or_b32 v16, v17, 3, v16")
    A("v_bfe_u32 v17, v3, 3, 1")
    A("v_lshl_or_b32 v16, v17, 2, v16")
    A("v_and_b32 v17, 15, v16")
    A("v_lshlrev_b32 v18, 10, v16")
    A("s_lshl_b32 s46, s37, 15")
    A(f"s_add_u32 s46, s46, {MATL}")
    A("v_add_u32 v18, s46, v18")
    A("v_xor_b32 v14, v14, v4")
    A("v_xor_b32 v17, v17, v4")
    for b in range(8):
        A(f"v_xor_b32 v19, {2*b}, v14")
        A(f"v_lshl_add_u32 v{AB+b}, v19, 4, v15")
        A(f"v_xor_b32 v19, {2*b}, v17")
        A(f"v_lshl_add_u32 v{BB+b}, v19, 4, v18")
    A("s_lshl_b32 s46, s3, 11")
    A(f"s_add_u32 s46, s46, {ZL}")
    A("v_add_u32 v19, s46, v5")
    A("s_waitcnt vmcnt(0) lgkmcnt(0)")
    A("s_barrier")
    stamp(A, 2)
    C = 64; FA = 32; FB = 48; DEP = 4
    def rd(ks):
        b, a_ = ks & 7, ks >> 3
        A(f"ds_read_b128 {v(FA+4*(ks%DEP),4)}, v{AB+b} offset:{a_*256}")
        A(f"ds_read_b128 {v(FB+4*(ks%DEP),4)}, v{BB+b} offset:{a_*256}")
    for ks in range(DEP - 1): rd(ks)
    for ks in range(32):
        if ks + DEP - 1 < 32: rd(ks + DEP - 1)
        out = min(DEP - 1, 31 - ks)
        A(f"s_waitcnt lgkmcnt({2*out})")
        A(f"v_mfma_f32_32x32x16_f16 {v(C,16)}, {v(FA+4*(ks%DEP),4)}, {v(FB+4*(ks%DEP),4)}, {'0' if ks==0 else v(C,16)}")
    for k in range(8):
        A(f"v_cvt_pk_f16_f32 v{24+k}, v{C+2*k}, v{C+2*k+1}")
    A("ds_write_b128 v19, v[24:27]")
    A("ds_write_b128 v19, v[28:31] offset:1024")
    A("s_waitcnt lgkmcnt(0)")
    A("s_barrier")
    stamp(A, 3)
    A(f"v_mov_b32 v10, {GOL}")
    A("s_cmp_eq_u32 s3, 0")
    A("s_cbranch_scc0 KC_lw")
    A("v_and_b32 v12, 3, v2")
    A("v_min_u32 v12, 2, v12")
    A("v_lshlrev_b32 v12, 4, v12")
    A("v_lshrrev_b32 v13, 2, v2")
    A("v_lshl_add_u32 v12, v13, 7, v12")
    A(f"s_mov_b32 s46, {FLAG_OFF + F3_REL + 0}")
    A(f"s_mov_b32 s47, {SPIN}")
    A.label("KC_gw2")
    A("buffer_load_dwordx4 v[128:131], v12, s[8:11], s46 offen sc1")
    A("s_waitcnt vmcnt(0)")
    A("v_and_b32 v128, v128, v129")
    A("v_and_b32 v130, v130, v131")
    A("v_and_b32 v128, v128, v130")
    A("v_cmp_ne_u32 vcc, 1, v128")
    A("s_cbranch_vccz KC_gg2")
    A("s_sub_u32 s47, s47, 1")
    A("s_cbranch_scc0 KC_gw2")
    A.label("KC_gg2")
    A("v_mov_b32 v12, 1")
    A("ds_write_b32 v10, v12 offset:20")
    A("s_branch KC_lgw1")
    A.label("KC_lw")
    ldswait("w1", 20, 1)
    stamp(A, 18)
    for i in range(32): wload(i)
    A("s_branch KC_ffn")
    A.label("KC_hi")
    A("s_setprio 1")
    A.label("KC_b1h")
    A("s_waitcnt vmcnt(0) lgkmcnt(0)")
    A.label("KC_b1h2")
    A("s_barrier")
    stamp(A, 2)
    A("s_lshl_b32 s39, s20, 8")
    A("s_lshl_b32 s44, s37, 7")
    A("s_add_u32 s44, s39, s44")
    A(f"s_add_u32 s44, s44, {MOD_OFF + 4096}")
    A("v_lshlrev_b32 v12, 5, v4")
    for q in range(2):
        for z in range(2):
            A(f"buffer_load_dwordx4 {v(GA+8*q+4*z,4)}, v12, s[8:11], s44 offen offset:{64*q+16*z}")
    A("s_cmp_eq_u32 s3, 7")
    A("s_cbranch_scc1 KC_h7")
    A("s_branch KC_nosl")
    A.label("KC_h7")
    if TCH == 2:
        A("s_lshr_b32 s26, s2, 3")
        A(f"s_mul_i32 s26, s26, {7*8192}")
        A(f"s_add_u32 s26, s26, {WQD}")
        A("v_lshlrev_b32 v8, 7, v2")
        A("s_waitcnt vmcnt(0)")
        for z in range(7):
            A(f"buffer_load_dword v{160+z}, v8, s[12:15], s26 offen")
            A("s_add_u32 s26, s26, 8192")
    A("s_cmp_eq_u32 s21, 0")
    A("s_cbranch_scc0 KC_nosl")
    A("v_lshlrev_b32 v8, 2, v2")
    A("s_lshl_b32 s39, s20, 8")
    A(f"s_add_u32 s39, s39, {SHP_OFF}")
    for k in range(16):
        A(f"buffer_load_dword v{128+k}, v8, s[8:11], s39 offen offset:{(k&1)*2048}")
        if k & 1: A("s_add_u32 s39, s39, 4096")
    A.label("KC_nosl")
    CT = 24; ST = 40; M = 56
    A("v_cvt_f32_u32 v9, v7")
    A(f"v_mul_f32 v9, {fl(1/2048)}, v9")
    A("v_lshlrev_b32 v10, 2, v4")
    A("v_cvt_f32_u32 v10, v10")
    A("v_mul_f32 v10, v9, v10")
    for k in range(16):
        s2c = 16*(k >> 3) + 8*((k >> 2) & 1) + (k & 3)
        A(f"v_fmamk_f32 v{ST+k}, v9, {fl(float(s2c))}, v10")
    for k in range(16):
        A(f"v_cos_f32 v{CT+k}, v{ST+k}")
        A(f"v_sin_f32 v{ST+k}, v{ST+k}")
    for k in range(8):
        A(f"v_cvt_pk_f16_f32 v{M+k}, v{CT+2*k}, v{CT+2*k+1}")
        A(f"v_cvt_pk_f16_f32 v{M+16+k}, v{ST+2*k}, v{ST+2*k+1}")
    A("v_lshlrev_b32 v13, 10, v4")
    A("v_lshl_add_u32 v13, v3, 4, v13")
    A("s_lshl_b32 s45, s21, 16")
    A("s_lshl_b32 s46, s20, 13")
    A("s_add_u32 s45, s45, s46")
    A("s_lshl_b32 s46, s37, 12")
    A("s_add_u32 s45, s45, s46")
    A("s_lshl_b32 s46, s36, 9")
    A("s_add_u32 s45, s45, s46")
    A("s_mov_b32 s52, 0x80008000")
    A("s_cmp_eq_u32 s36, 0")
    A("s_cselect_b32 s53, 0, s52")
    A("s_cselect_b32 s56, -1, 0")
    A("s_cselect_b32 s57, 0, -1")
    A("s_cmp_eq_u32 s37, 0")
    A("s_cselect_b32 s54, 0, s52")
    A("s_xor_b32 s55, s53, s54")
    A("s_xor_b32 s55, s55, s52")
    A(f"v_add_u32 v1, {ZL}, v5")
    A("s_lshl_b32 s46, s20, 1")
    A("s_add_u32 s46, s46, s37")
    A("s_cmp_eq_u32 s46, 1")
    A("s_cselect_b32 s46, 4096, 0")
    A("v_cmp_eq_u32 vcc, 0, v3")
    A("v_mov_b32 v6, s46")
    A("v_cndmask_b32 v6, 0, v6, vcc")
    A("v_add_u32 v6, v6, v1")
    A("s_cmp_eq_u32 s21, 0")
    A("s_cbranch_scc1 KC_mspec")
    for k in range(8):
        A(f"v_xor_b32 v{M+8+k}, s53, v{M+16+k}")
        A(f"v_xor_b32 v{M+24+k}, s55, v{M+k}")
        A(f"v_xor_b32 v{M+16+k}, s54, v{M+16+k}")
    A("s_branch KC_mdone")
    A.label("KC_mspec")
    for k in range(8):
        A(f"v_xor_b32 v{M+16+k}, s54, v{M+16+k}")
        A(f"v_and_b32 v{M+8+k}, s57, v{M+k}")
        A(f"v_and_b32 v{M+k}, s56, v{M+k}")
        A(f"v_and_b32 v{M+24+k}, s57, v{M+16+k}")
        A(f"v_and_b32 v{M+16+k}, s56, v{M+16+k}")
    A("s_cmp_eq_u32 s3, 7")
    A("s_cbranch_scc0 KC_mdone")
    A("s_waitcnt vmcnt(0)")
    for st in (8, 4, 2, 1):
        for i in range(st): A(f"v_add_f32 v{128+i}, v{128+i}, v{128+st+i}")
    A("v_lshlrev_b32 v8, 2, v2")
    A(f"v_add_u32 v8, {SHL}, v8")
    A("ds_write_b32 v8, v128")
    A("s_waitcnt lgkmcnt(0)")
    A.label("KC_mdone")
    XU = 16
    A("s_cmp_eq_u32 s3, 7")
    A("s_cbranch_scc0 KC_xw")
    if TCH != 2: A("s_waitcnt vmcnt(0)")
    A("s_branch KC_xw2")
    A.label("KC_xw")
    A("s_waitcnt vmcnt(0)")
    A.label("KC_xw2")
    A("s_cmp_eq_u32 s37, 0")
    A("s_cbranch_scc0 KC_xum")
    for k in range(8):
        A(f"v_lshlrev_b32 v{XU+2*k}, 16, v{XD+k}")
        A(f"v_and_b32 v{XU+2*k+1}, s58, v{XD+k}")
    A("s_branch KC_xud")
    A.label("KC_xum")
    for q in range(2):
        A(f"v_lshlrev_b32 v{XU+8*q}, 16, v{XS+q}")
        for k in range(1, 8):
            el = 8 - k
            r = XD + 4*q + (el >> 1)
            if el & 1: A(f"v_and_b32 v{XU+8*q+k}, s58, v{r}")
            else: A(f"v_lshlrev_b32 v{XU+8*q+k}, 16, v{r}")
    A.label("KC_xud")
    A("s_lshl_b32 s46, s21, 3")
    A("s_add_u32 s46, s46, s20")
    A("s_lshl_b32 s47, s46, 10")
    A("s_and_b32 s44, s3, 3")
    A("s_lshl_b32 s39, s44, 8")
    A("s_add_u32 s47, s47, s39")
    A(f"s_add_u32 s47, s47, {STS_OFF}")
    A("s_lshl_b32 s46, s46, 7")
    A("s_lshl_b32 s44, s44, 2")
    A("s_add_u32 s46, s46, s44")
    A(f"s_add_u32 s46, s46, {FLAG_OFF}")
    A("v_lshlrev_b32 v12, 3, v3")
    A("v_lshl_add_u32 v12, v4, 2, v12")
    A("v_mov_b32 v8, 0\nv_mov_b32 v9, 1\nv_mov_b32 v10, 0\nv_mov_b32 v11, 0")
    A("s_cmp_eq_u32 s3, 7")
    A("s_cbranch_scc1 KC_nohg")
    A.label("KC_nohg")
    stamp(A, 18)
    A("s_barrier")
    stamp(A, 3)
    ZF = [32, 36, 40, 44, 48, 52, 120, 124]; C = 88
    for k in range(4): A(f"ds_read_b128 {v(ZF[k],4)}, v6 offset:{1024*k}")
    for k in range(4): A(f"ds_read_b128 {v(ZF[4+k],4)}, v1 offset:{4096+1024*k}")
    for k in range(4):
        A(f"s_waitcnt lgkmcnt({7-k})")
        A(f"v_mfma_f32_32x32x16_f16 {v(C,16)}, {v(ZF[k],4)}, {v(M+4*k,4)}, {'0' if k==0 else v(C,16)}")
    A("s_waitcnt lgkmcnt(0)")
    A("s_cmp_eq_u32 s20, 0")
    A("s_cbranch_scc0 KC_nz")
    A("s_mov_b32 exec_lo, 1")
    A("s_mov_b32 exec_hi, 1")
    for k in range(4, 8):
        for z in range(4): A(f"v_mov_b32 v{ZF[k]+z}, 0")
    A("s_mov_b64 exec, -1")
    A("s_nop 1")
    A.label("KC_nz")
    for k in range(4, 8):
        A(f"v_mfma_f32_32x32x16_f16 {v(C,16)}, {v(ZF[k],4)}, {v(M+4*k,4)}, {v(C,16)}")
    SBR = 56; CBR = 72
    A("s_lshl_b32 s39, s20, 8")
    A("s_lshl_b32 s44, s37, 7")
    A("s_add_u32 s44, s39, s44")
    A(f"s_add_u32 s44, s44, {MOD_OFF + 3*2048}")
    A("v_lshlrev_b32 v1, 5, v4")
    for base, off in ((SBR, 0), (CBR, 2048)):
        for q in range(2):
            for z in range(2):
                A(f"buffer_load_dwordx4 {v(base+8*q+4*z,4)}, v1, s[8:11], s44 offen offset:{off+64*q+16*z}")
    A("s_or_b32 s39, s21, s36")
    A("s_cmp_eq_u32 s39, 0")
    A("s_cbranch_scc0 KC_nosh")
    A("s_lshl_b32 s39, s37, 7")
    A(f"s_add_u32 s39, s39, {SHL}")
    A("v_lshl_add_u32 v6, v4, 5, s39")
    for q in range(2):
        for z in range(2):
            A(f"ds_read_b128 {v(32+8*q+4*z,4)}, v6 offset:{64*q+16*z}")
    A("s_waitcnt lgkmcnt(0)")
    A("s_mov_b32 exec_lo, 1")
    A("s_mov_b32 exec_hi, 1")
    for k in range(16):
        A(f"v_fmamk_f32 v{C+k}, v{32+k}, {fl(8.0)}, v{C+k}")
    A("s_mov_b64 exec, -1")
    A.label("KC_nosh")
    for k in range(16):
        A(f"v_fmac_f32 v{XU+k}, v{GA+k}, v{C+k}")
    for k in range(8):
        A(f"v_cvt_pk_bf16_f32 v{32+k}, v{XU+2*k}, v{XU+2*k+1}")
    for k in range(8):
        A(f"v_dot2c_f32_bf16 v10, s59, v{32+k}")
        A(f"v_dot2c_f32_bf16 v11, v{32+k}, v{32+k}")
    A("v_permlane32_swap_b32 v10, v11")
    A("v_add_f32 v10, v10, v11")
    A("v_min_u32 v10, -2, v10")
    A("buffer_store_dword v10, v12, s[8:11], s47 offen sc1")
    A("buffer_store_dwordx4 v[32:35], v13, s[16:19], s45 offen sc1")
    A("buffer_store_dwordx4 v[36:39], v13, s[16:19], s45 offen offset:2048 sc1")
    stamp(A, 4)
    for k in range(8):
        A(f"v_lshlrev_b32 v{XU+2*k}, 16, v{32+k}")
        A(f"v_and_b32 v{XU+2*k+1}, s58, v{32+k}")
    A("v_lshlrev_b32 v6, 3, v3")
    A("v_lshl_add_u32 v6, v4, 9, v6")
    A("s_lshl_b32 s39, s21, 13")
    A("s_lshl_b32 s44, s36, 8")
    A("s_add_u32 s39, s39, s44")
    A(f"s_add_u32 s39, s39, {STS_OFF}")
    A("s_add_u32 s44, s39, 4096")
    A(f"s_mov_b32 s47, {SPIN}")
    SG = 88
    if SDL: A(f"s_waitcnt vmcnt(2)")
    A.label("KC_sg")
    for j in range(8):
        A(f"buffer_load_dwordx2 {v(SG+2*j,2)}, v6, s[8:11], {'s39' if j < 4 else 's44'} offen offset:{(j&3)*1024} sc1")
    A("s_waitcnt vmcnt(0)")
    for j in range(5): A(f"v_max3_u32 v{104+j}, v{SG+3*j}, v{SG+3*j+1}, v{SG+3*j+2}")
    A(f"v_max3_u32 v104, v104, v105, v{SG+15}")
    A("v_max3_u32 v106, v106, v107, v108")
    A("v_max_u32 v104, v104, v106")
    A("v_cmp_eq_u32 vcc, -1, v104")
    A("s_cbranch_vccz KC_sgd")
    A("s_sub_u32 s47, s47, 1")
    A("s_cbranch_scc0 KC_sg")
    A.label("KC_sgd")
    stamp(A, 8)
    for st in (4, 2, 1):
        for w in range(st): A(f"v_pk_add_f32 {v(SG+2*w,2)}, {v(SG+2*w,2)}, {v(SG+2*(w+st),2)}")
    A(f"v_mov_b32 v{SG+2}, v{SG}")
    A(f"v_mov_b32 v{SG+3}, v{SG+1}")
    A(f"v_permlane32_swap_b32 v{SG}, v{SG+2}")
    A(f"v_permlane32_swap_b32 v{SG+1}, v{SG+3}")
    A(f"v_pk_add_f32 {v(SG,2)}, {v(SG,2)}, {v(SG+2,2)}")
    A(f"v_mul_f32 v{SG}, {fl(1/512)}, v{SG}")
    A(f"v_mul_f32 v{SG+1}, {fl(1/512)}, v{SG+1}")
    A(f"v_fma_f32 v{SG+1}, -v{SG}, v{SG}, v{SG+1}")
    A(f"v_max_f32 v{SG+1}, 0, v{SG+1}")
    A(f"v_add_f32 v{SG+1}, {fl(1e-5)}, v{SG+1}")
    A(f"v_rsq_f32 v{SG+2}, v{SG+1}")
    A(f"v_mul_f32 v{SG+3}, -v{SG}, v{SG+2}")
    for k in range(8): A(f"v_pk_fma_f32 {v(XU+2*k,2)}, {v(XU+2*k,2)}, {v(SG+2,2)}, {v(SG+2,2)} op_sel:[0,0,1] op_sel_hi:[1,0,1]")
    for k in range(8): A(f"v_pk_fma_f32 {v(XU+2*k,2)}, {v(XU+2*k,2)}, {v(CBR+2*k,2)}, {v(SBR+2*k,2)}")
    for k in range(8): A(f"v_cvt_pk_bf16_f32 v{40+k}, v{XU+2*k}, v{XU+2*k+1}")
    A(f"s_add_u32 s45, s45, {H2_REL}")
    A("buffer_store_dwordx4 v[40:43], v13, s[16:19], s45 offen sc1")
    A("buffer_store_dwordx4 v[44:47], v13, s[16:19], s45 offen offset:2048 sc1")
    A("s_mov_b64 exec, 1")
    A("s_waitcnt vmcnt(0)")
    A("buffer_store_dword v9, v8, s[8:11], s46 offen sc1")
    A("s_mov_b64 exec, -1")
    stamp(A, 5)
    A("s_cmp_eq_u32 s3, 7")
    A("s_cbranch_scc1 KC_w7a")
    A(f"v_mov_b32 v10, {GOL}")
    ldswait("w2", 20, 1)
    for i in range(HW1): wload(i)
    A("s_branch KC_ffn")
    A.label("KC_w7a")
    A.label("KC_ffn")
    srd(A, 48, 4, ACT_BYTES, ACT_OFF)
    A("s_lshl_b32 s24, s61, 16")
    A("s_lshl_b32 s25, s67, 13")
    A("s_add_u32 s24, s24, s25")
    A(f"s_add_u32 s24, s24, {H2_REL}")
    A("s_xor_b32 s25, s24, 0x10000")
    A("s_sub_u32 s27, s67, s66")
    A("s_and_b32 s27, s27, 7")
    A("s_lshl_b32 s27, s27, 13")
    A("s_lshl_b32 s52, s21, 3")
    A("s_add_u32 s52, s52, s70")
    A("s_mul_i32 s53, s52, 28672")
    A("s_lshl_b32 s52, s52, 7")
    A("s_and_b32 s22, s21, 1")
    A("s_lshl_b32 s22, s22, 5")
    A("s_add_u32 s52, s52, s22")
    A(f"s_add_u32 s52, s52, {F2_REL}")
    A("s_xor_b32 s23, s52, 32")
    A(f"s_add_u32 s56, s4, {FLAG_OFF}")
    A("s_addc_u32 s57, s5, 0")
    side_addr()
    A("s_cmp_lt_u32 s3, 4")
    A("s_cbranch_scc0 KC_nowd")
    for lam in range(8, 8 + LWE): dload(lam)
    A.label("KC_nowd")
    stamp(A, 6)
    A("s_lshl_b32 s44, s61, 3")
    A("s_add_u32 s44, s44, s67")
    A("s_lshl_b32 s44, s44, 7")
    A("s_xor_b32 s45, s44, 0x400")
    def poll1(tag, so):
        A(f"s_mov_b32 s47, {SPIN}")
        A.label(f"KC_poll{tag}")
        A(f"s_load_dwordx4 s[36:39], s[56:57], {so} glc")
        A("s_waitcnt lgkmcnt(0)")
        A("s_and_b64 s[36:37], s[36:37], s[38:39]")
        A("s_and_b32 s36, s36, s37")
        A("s_cmp_eq_u32 s36, 1")
        A(f"s_cbranch_scc1 KC_got{tag}")
        A("s_sub_u32 s47, s47, 1")
        A(f"s_cbranch_scc0 KC_poll{tag}")
        A.label(f"KC_got{tag}")
    def h2dma(so, ldsoff):
        for half in range(2):
            A(f"s_add_u32 m0, s27, {ldsoff + half*4096}")
            if half: A(f"s_add_u32 {so}, {so}, 4096")
            for i in range(4): A(f"buffer_load_dwordx4 v5, s[16:19], {so} offen offset:{i*1024} sc1 lds")
    poll1("a", "s44")
    stamp(A, 7)
    h2dma("s24", 0)
    A.label("KC_n1d")
    A("v_lshlrev_b32 v7, 10, v4")
    A("v_lshl_add_u32 v7, v3, 4, v7")
    A("v_mov_b32 v8, 0")
    A("v_mov_b32 v9, 1")
    A(f"v_mov_b32 v10, {GOL}")
    c0 = -2.0 * math.sqrt(2.0 / math.pi) * math.log2(math.e)
    A(f"s_mov_b32 s32, {fl(c0 * 0.044715)}")
    A(f"v_mov_b32 v11, {fl(c0)}")
    A("s_lshl_b32 s46, s61, 3")
    A("s_lshr_b32 s47, s60, 1")
    A("s_add_u32 s46, s46, s47")
    A("s_xor_b32 s47, s46, 8")
    A("s_mul_i32 s29, s46, 28672")
    A("s_mul_i32 s31, s47, 28672")
    A("s_lshl_b32 s30, s3, 1")
    A("s_and_b32 s28, s60, 1")
    A("s_add_u32 s30, s30, s28")
    A("s_lshl_b32 s30, s30, 11")
    A("s_add_u32 s29, s29, s30")
    A("s_add_u32 s31, s31, s30")
    A("s_lshl_b32 s28, s28, 3")
    A("s_add_u32 s28, s28, s3")
    A("s_lshl_b32 s28, s28, 2")
    A("s_lshl_b32 s33, s46, 7")
    A("s_add_u32 s33, s33, s28")
    A(f"s_add_u32 s33, s33, {FLAG_OFF + F2_REL}")
    A("s_xor_b32 s34, s33, 0x400")
    poll1("b", "s45")
    if H2B:
        h2dma("s25", 65536)
        A("s_waitcnt vmcnt(8) lgkmcnt(0)")
        A("s_barrier")
    else:
        A("s_waitcnt vmcnt(0) lgkmcnt(0)")
        A("s_barrier")
        h2dma("s25", 65536)
    stamp(A, 9)
    def signal(off):
        A("s_mov_b64 exec, 1")
        A("s_waitcnt lgkmcnt(0)")
        A(f"ds_add_u32 v10, v9 offset:{off}")
        A("s_mov_b64 exec, -1")
    def flag(so):
        A("s_mov_b64 exec, 1")
        A("s_waitcnt vmcnt(0)")
        A(f"buffer_store_dword v9, v8, s[8:11], {so} offen sc1")
        A("s_mov_b64 exec, -1")
    def sreq(side): A(f"s_load_dwordx8 s[36:43], s[56:57], {'s52' if side == 0 else 's23'} glc")
    def stest(lo, hi):
        A(f"s_and_b32 s28, s{36+lo}, s{37+lo}")
        for k in range(lo + 2, hi): A(f"s_and_b32 s28, s28, s{36+k}")
        A("s_cmp_eq_u32 s28, 1")
    def spoll(tag, side, lo, hi):
        A(f"s_mov_b32 s47, {SPIN}")
        A.label(f"KC_pl{tag}")
        sreq(side)
        A("s_waitcnt lgkmcnt(0)")
        stest(lo, hi)
        A(f"s_cbranch_scc1 KC_gt{tag}")
        if SL2: A(f"s_sleep {SL2}")
        A("s_sub_u32 s47, s47, 1")
        A(f"s_cbranch_scc0 KC_pl{tag}")
        A.label(f"KC_gt{tag}")
    C = 16; GT = 48
    def park():
        ldswait(f"a{len(A.items)}", 4, 7)
        A("s_and_b32 s55, s3, 3")
        A("s_lshl_b32 s55, s55, 14")
        A("s_xor_b32 s26, s70, 4")
        A("s_sub_u32 s26, s26, s70")
        A(f"s_mul_i32 s26, s26, {WQC}")
        A("s_add_u32 s26, s26, s65")
        for lam in range(8): dload(lam, lam * 2048, "s26")
    AR = [192 + 4*k for k in range(16)]
    def aload(lam, slot):
        ft = lam % 7; vo = "v14" if lam < 7 else "v15"
        A(f"s_add_u32 s30, s53, {ft*4096}")
        for nt in range(2):
            A(f"buffer_load_dwordx4 {v(AR[slot+nt],4)}, {vo}, s[48:51], s30 offen offset:{nt*1024} sc1")
    A("s_cmp_lt_u32 s3, 4")
    A("s_cbranch_scc1 KC_p1")
    A("s_cmp_eq_u32 s3, 7")
    A("s_cbranch_scc1 KC_nohw")
    for i in range(HW1, 32): wload(i)
    A.label("KC_nohw")
    for lam in range(8, 14): dload(lam)
    A("s_waitcnt vmcnt(12)")
    signal(0)
    A("s_cmp_eq_u32 s3, 7")
    A("s_cbranch_scc1 KC_w7b")
    A("s_mov_b32 s52, s23")
    A.label("KC_p1")
    A("s_setprio 2")
    A("s_mov_b32 s35, 0")
    A.label("KC_pass")
    BR = [48, 56, 80, 88]
    def brd(ks):
        A(f"ds_read_b128 {v(BR[ks&3],4)}, v7 offset:{ks*2048}")
        A(f"ds_read_b128 {v(BR[ks&3]+4,4)}, v7 offset:{ks*2048+512}")
    for ks in range(3): brd(ks)
    for ks in range(32):
        if ks + 3 < 32: brd(ks + 3)
        if ks < 28: A(f"s_waitcnt lgkmcnt({2*min(3, 31-ks)})")
        elif ks == 28:
            A("s_waitcnt lgkmcnt(0)")
            A("s_cmp_eq_u32 s35, 0")
            A("s_cbranch_scc1 KC_nosr")
            sreq(0)
            A.label("KC_nosr")
        for nt in ((0, 1) if ks & 1 == 0 else (1, 0)):
            c = C + 16*nt
            A(f"v_mfma_f32_32x32x16_bf16 {v(c,16)}, {v(W+4*ks,4)}, {v(BR[ks&3]+4*nt,4)}, {'0' if ks==0 else v(c,16)}")
    A("s_setprio 1")
    A("s_cmp_eq_u32 s35, 0")
    A("s_cbranch_scc0 KC_pe2")
    stamp(A, 10)
    signal(4)
    A("s_branch KC_gelu")
    A.label("KC_pe2")
    stamp(A, 13)
    signal(8)
    A("s_mov_b32 s29, s31")
    A("s_mov_b32 s33, s34")
    A("s_mov_b32 s54, 0")
    A("s_cmp_lt_u32 s3, 4")
    A("s_cbranch_scc1 KC_gelu")
    dload(7)
    stest(0, 4)
    A("s_cbranch_scc0 KC_gelu")
    A("s_mov_b32 s54, 1")
    for lam in range(7, 11): aload(lam, 2*(lam - 7))
    A.label("KC_gelu")
    A("s_nop 3")
    for nt in (1, 0):
        g0 = C + 16*nt; u0 = g0 + 8; t0 = GT
        for k in range(8): A(f"v_mul_f32 v{t0+k}, v{g0+k}, v{g0+k}")
        for k in range(8): A(f"v_fma_f32 v{t0+k}, v{t0+k}, s32, v11")
        for k in range(8): A(f"v_mul_f32 v{t0+k}, v{t0+k}, v{g0+k}")
        for k in range(8): A(f"v_exp_f32 v{t0+k}, v{t0+k}")
        for k in range(8): A(f"v_mul_f32 v{u0+k}, v{u0+k}, v{g0+k}")
        for k in range(8): A(f"v_add_f32 v{t0+k}, 1.0, v{t0+k}")
        for k in range(8): A(f"v_rcp_f32 v{t0+k}, v{t0+k}")
        for k in range(8): A(f"v_mul_f32 v{u0+k}, v{u0+k}, v{t0+k}")
        for k in range(4): A(f"v_cvt_pk_bf16_f32 v{g0+k}, v{u0+2*k}, v{u0+2*k+1}")
        A(f"buffer_store_dwordx4 {v(g0,4)}, v5, s[48:51], s29 offen offset:{nt*1024} sc1")
    A("s_cmp_eq_u32 s35, 0")
    A("s_cbranch_scc0 KC_after2")
    stamp(A, 11)
    A("s_mov_b32 s35, 1")
    A("v_add_u32 v7, 0x10000, v7")
    A("s_cmp_lt_u32 s3, 4")
    A("s_cbranch_scc0 KC_mid_hi")
    flag("s33")
    signal(0)
    for lam in range(8 + LWE, 14): dload(lam)
    A("s_branch KC_mid_done")
    A.label("KC_mid_hi")
    flag("s33")
    park()
    A("s_waitcnt vmcnt(0)")
    signal(12)
    A.label("KC_mid_done")
    ldswait("b", 0, 8)
    stamp(A, 12)
    A("s_branch KC_pass")
    C = 128
    def mmq(d0, d1, a0, a1, first=False):
        for t, nt in ((0,0),(0,1),(1,1),(1,0)):
            c = C + 32*t + 16*nt
            A(f"v_mfma_f32_32x32x16_bf16 {v(c,16)}, {v((d0,d1)[t],4)}, {v((a0,a1)[nt],4)}, {'0' if first else v(c,16)}")
    def mm1(lam, slot, first=False): mmq(DR(lam,0), DR(lam,1), AR[slot], AR[slot+1], first)
    def mm(lams, slot0, n_young):
        for ik, lam in enumerate(lams):
            A(f"s_waitcnt vmcnt({2*len(lams) - 2*ik - 2 + n_young})")
            mm1(lam, slot0 + 2*ik)
    A.label("KC_after2")
    stamp(A, 14)
    A("s_cmp_lt_u32 s3, 4")
    A("s_cbranch_scc1 KC_lo2")
    for k in range(64): A(f"v_mov_b32 v{C+k}, 0")
    flag("s33")
    A("s_setprio 0")
    A("s_cmp_eq_u32 s54, 1")
    A("s_cbranch_scc1 KC_b2")
    A("s_branch KC_slow3")
    A.label("KC_w7b")
    A(f"s_setprio {E('W7P', 3)}")
    dload(7)
    items = [(k, lam) for k in range(4) for lam in range(4)] + [(k, lam) for k in range(4) for lam in range(4, 7)]
    RQ = [16 + 4*q for q in range(12)] + [192 + 4*q for q in range(16)]
    NS = 7
    SQ = lambda i, q: RQ[4*(i % NS) + q]
    DLT = [44, 45, 46, 54]
    for k in range(4):
        A(f"s_add_u32 s{DLT[k]}, s70, {5 + k}")
        A(f"s_and_b32 s{DLT[k]}, s{DLT[k]}, 7")
        A(f"s_sub_u32 s{DLT[k]}, s{DLT[k]}, s70")
    def iw(i):
        k, lam = items[i]
        A(f"s_mul_i32 s71, s{DLT[k]}, {WQC}")
        A("s_add_u32 s71, s71, s65")
        A(f"s_add_u32 s71, s71, {lam*4096}")
        for t in range(2): A(f"buffer_load_dwordx4 {v(SQ(i,t),4)}, v14, s[12:15], s71 offen offset:{t*1024}")
    def ia(i):
        k, lam = items[i]
        A(f"s_mul_i32 s33, s{DLT[k]}, 28672")
        A("s_add_u32 s33, s33, s53")
        A(f"s_add_u32 s33, s33, {lam*4096}")
        for nt in range(2): A(f"buffer_load_dwordx4 {v(SQ(i,2+nt),4)}, v14, s[48:51], s33 offen offset:{nt*1024} sc1")
    def poll4(tag, off, n):
        PR = [36, 40, 24, 28]
        A(f"s_mov_b32 s47, {SPIN}")
        A.label(f"KC_q{tag}")
        for k in range(4):
            A(f"s_lshl_b32 s34, s{DLT[k]}, 7")
            A("s_add_u32 s34, s34, s52")
            A(f"s_add_u32 s34, s34, {off}")
            A(f"s_load_dwordx4 s[{PR[k]}:{PR[k]+3}], s[56:57], s34 glc")
        A("s_waitcnt lgkmcnt(0)")
        for k in range(1, 4):
            A(f"s_and_b64 s[36:37], s[36:37], s[{PR[k]}:{PR[k]+1}]")
            A(f"s_and_b64 s[38:39], s[38:39], s[{PR[k]+2}:{PR[k]+3}]")
        A("s_and_b32 s36, s36, s37")
        A("s_and_b32 s36, s36, s38")
        if n == 4: A("s_and_b32 s36, s36, s39")
        A("s_cmp_eq_u32 s36, 1")
        A(f"s_cbranch_scc1 KC_r{tag}")
        if SL2: A(f"s_sleep {SL2}")
        A("s_sub_u32 s47, s47, 1")
        A(f"s_cbranch_scc0 KC_q{tag}")
        A.label(f"KC_r{tag}")
    order = []
    for i in range(NS): iw(i); order += [("w", i)] * 2
    poll4("0", 0, 4)
    for i in range(NS): ia(i); order += [("a", i)] * 2
    park(); order += [("p", 0)] * 16
    for i in range(28):
        last = max(j for j, o in enumerate(order) if o == ("a", i))
        A(f"s_waitcnt vmcnt({len(order) - 1 - last})")
        if i == NS: signal(12)
        mmq(SQ(i,0), SQ(i,1), SQ(i,2), SQ(i,3), i == 0)
        if i + NS < 28:
            iw(i + NS); order += [("w", i + NS)] * 2
            if i + NS == 16: poll4("1", 16, 3)
            ia(i + NS); order += [("a", i + NS)] * 2
    stamp(A, 15)
    A("s_branch KC_slow3")
    A.label("KC_lo2")
    stest(0, 7)
    A("s_cbranch_scc1 KC_gtg")
    flag("s33")
    spoll("g0", 0, 0, 7)
    for lam in range(7): aload(lam, 2*lam)
    A("s_branch KC_lo3")
    A.label("KC_gtg")
    for lam in range(7): aload(lam, 2*lam)
    A("s_mov_b64 exec, 1")
    A("s_waitcnt vmcnt(14)")
    A("buffer_store_dword v9, v8, s[8:11], s33 offen sc1")
    A("s_mov_b64 exec, -1")
    A.label("KC_lo3")
    A("s_setprio 0")
    if LDL:
        for lam in range(8, 14): dload(lam)
    ldswait("k", 12, 4)
    A("s_lshl_b32 s55, s3, 14")
    A("v_add_u32 v13, s55, v5")
    for lam in range(8):
        for t in range(2): A(f"ds_read_b128 {v(DR(lam,t),4)}, v13 offset:{lam*2048 + t*1024}")
    A(f"s_waitcnt vmcnt({18 if LDL else 6}) lgkmcnt(0)")
    stamp(A, 15)
    sreq(1)
    for lam in range(4): mm1(lam, 2*lam, lam == 0)
    A("s_waitcnt lgkmcnt(0)")
    stest(0, 4)
    A("s_cbranch_scc0 KC_slow2")
    for lam in range(7, 11): aload(lam, 2*(lam - 7))
    A("s_waitcnt vmcnt(8)")
    for lam in range(4, 7): mm1(lam, 2*lam)
    A("s_branch KC_b2")
    A.label("KC_slow2")
    A("s_waitcnt vmcnt(0)")
    for lam in range(4, 7): mm1(lam, 2*lam)
    A.label("KC_slow3")
    spoll("h", 1, 0, 4)
    for lam in range(7, 11): aload(lam, 2*(lam - 7))
    A.label("KC_b2")
    sreq(1)
    A("v_and_b32 v9, 7, v0")
    A("v_lshrrev_b32 v1, 3, v0")
    A("s_lshl_b32 s31, s20, 3")
    A("v_add_u32 v11, s31, v9")
    A("v_lshlrev_b32 v12, 5, v11")
    A(f"s_mov_b32 s32, {MOD_OFF + 5*2048}")
    A("buffer_load_dwordx4 v[24:27], v12, s[8:11], s32 offen")
    A("buffer_load_dwordx4 v[28:31], v12, s[8:11], s32 offen offset:16")
    A("v_sub_u32 v32, 63, v11")
    A("s_cmp_lt_u32 s20, 4")
    A("s_cselect_b64 vcc, -1, 0")
    A("s_cselect_b32 s33, 0, 4")
    A("s_mov_b32 s34, 0x01000c0c")
    A("s_cselect_b32 s34, 0x05040c0c, s34")
    A("s_add_u32 s35, s34, 0x02020000")
    A("v_cndmask_b32 v32, v32, v11, vcc")
    A("v_lshrrev_b32 v33, 2, v32")
    A("v_and_b32 v32, 3, v32")
    A("v_lshl_add_u32 v32, v33, 3, v32")
    A("v_add_u32 v32, s33, v32")
    A("v_lshlrev_b32 v32, 10, v32")
    A("v_lshl_add_u32 v32, v1, 4, v32")
    A("v_sub_u32 v33, 64, v11")
    A("v_and_b32 v33, 31, v33")
    A("v_lshrrev_b32 v34, 2, v33")
    A("v_and_b32 v33, 3, v33")
    A("v_lshl_add_u32 v33, v34, 3, v33")
    A("v_add_u32 v33, 4, v33")
    A("v_lshlrev_b32 v33, 10, v33")
    A("v_lshl_add_u32 v33, v1, 4, v33")
    A("s_lshl_b32 s31, s21, 16")
    A("buffer_load_dwordx4 v[16:19], v32, s[16:19], s31 offen sc1")
    A("buffer_load_ushort v20, v33, s[16:19], s31 offen sc1")
    A("v_and_b32 v32, 31, v1")
    A("v_lshlrev_b32 v32, 6, v32")
    A("v_add_u32 v32, s21, v32")
    A("v_add_u32 v33, 32, v32")
    A("v_sub_u32 v34, 0x800, v32")
    A("s_cmp_eq_u32 s21, 0")
    A("s_cselect_b64 vcc, -1, 0")
    A("v_cndmask_b32 v33, v34, v33, vcc")
    A("s_cmp_lt_u32 s3, 4")
    A("s_cselect_b64 vcc, -1, 0")
    A("v_cndmask_b32 v32, v33, v32, vcc")
    A("v_lshlrev_b32 v32, 10, v32")
    A("v_lshl_add_u32 v11, v11, 4, v32")
    srd(A, 44, 68, 0x200000) if False else None
    A(f"v_mul_u32_u24 v21, {4*RCH}, v4")
    A("v_lshl_add_u32 v21, v3, 4, v21")
    A(f"s_mul_i32 s31, s3, {RSRC}")
    A(f"s_add_u32 s31, s31, {REDL}")
    A("v_add_u32 v21, s31, v21")
    A(f"v_mul_u32_u24 v22, {RCH}, v9")
    A("v_lshl_add_u32 v22, v1, 4, v22")
    A(f"v_add_u32 v22, {REDL}, v22")
    A("s_waitcnt lgkmcnt(0)")
    stest(4, 7)
    A("s_cbranch_scc0 KC_slow4")
    for lam in range(11, 14): aload(lam, 8 + 2*(lam - 11))
    mm(list(range(7, 11)), 0, 10)
    A("s_branch KC_b3")
    A.label("KC_slow4")
    mm(list(range(7, 11)), 0, 4)
    spoll("3", 1, 4, 7)
    for lam in range(11, 14): aload(lam, 8 + 2*(lam - 11))
    A.label("KC_b3")
    XO = 32
    A("s_waitcnt vmcnt(6)")
    for k in range(8):
        mir = "v20" if k == 0 else f"v{16 + ((8-k) >> 1)}"
        A(f"v_perm_b32 v{XO+k}, v{16 + (k >> 1)}, {mir}, {'s34' if k % 2 == 0 else 's35'}")
    srd(A, 60, 68, 0x200000)
    ldswait("d", 8, 7)
    mm(list(range(11, 14)), 8, 0)
    PK = 192
    for nt in (1, 0):
        for jj in range(4):
            p = PK + 16*nt + 4*jj
            for t in range(2):
                c = C + 32*t + 16*nt
                A(f"v_cvt_pk_bf16_f32 v{p+2*t}, v{c+jj}, v{c+4+jj}")
                A(f"v_cvt_pk_bf16_f32 v{p+2*t+1}, v{c+8+jj}, v{c+12+jj}")
            A(f"ds_write_b128 v21, {v(p,4)} offset:{jj*RCH + nt*512}")
    A("s_waitcnt lgkmcnt(0)")
    A("s_barrier")
    stamp(A, 20)
    D = 96; AC = 64
    for i in range(8): A(f"ds_read_b128 {v(D+4*i,4)}, v22 offset:{i*RSRC}")
    for i in range(8):
        A(f"s_waitcnt lgkmcnt({7-i})")
        tb = AC if i == 0 else 72
        for j in range(4):
            A(f"v_lshlrev_b32 v{tb+2*j}, 16, v{D+4*i+j}")
            A(f"v_and_b32 v{tb+2*j+1}, s58, v{D+4*i+j}")
        if i:
            for j in range(4): A(f"v_pk_add_f32 {v(AC+2*j,2)}, {v(AC+2*j,2)}, {v(tb+2*j,2)}")
    for k in range(8): A(f"v_fmac_f32 v{XO+k}, v{24+k}, v{AC+k}")
    for k in range(4): A(f"v_cvt_pk_bf16_f32 v{48+k}, v{XO+2*k}, v{XO+2*k+1}")
    A("buffer_store_dwordx4 v[48:51], v11, s[60:63], 0 offen")
    if STAMPS: A("s_waitcnt vmcnt(0)")
    stamp_flush(A, 0, 22)
    A.label("KC_end")
    A("s_endpgm")
    A.label("KC_code_end")
    return A
```

```python
from gen_common import *
K1_SLAB, K1_GEMV, K1_REL = 64, 96, 96
K1_GRID = K1_SLAB + K1_GEMV + K1_REL
RS = 576
NPF = 0
PST = int(os.environ.get("P0ST", "0"))
N1, N2 = 41 + 64 + 96, 80 + 96
def prefill(A):
    srd(A, 52, 4, LOW_BYTES)
    A("v_and_b32 v1, 63, v0")
    A("v_lshlrev_b32 v1, 4, v1")
    A("s_lshl_b32 s21, s36, 13")
    A(f"s_add_u32 s22, s21, {STS_OFF}")
    A(f"s_add_u32 s23, s21, {FLAG_OFF - 32*8192}")
    A("s_cmp_lt_u32 s36, 32")
    A("s_cselect_b32 s22, s22, s23")
    A("s_cselect_b32 s24, -1, 0")
    A("s_add_u32 s23, s22, 4096")
    for k in range(4): A(f"v_mov_b32 v{8+k}, s24")
    for z in range(8): A(f"buffer_store_dwordx4 v[8:11], v1, s[52:55], {'s22' if z < 4 else 's23'} offen offset:{(z&3)*1024} sc1")
    A("s_waitcnt vmcnt(0)")
def arrive(A, off, tag):
    A("s_mov_b32 s58, 1")
    A("s_atomic_add s58, s[66:67], 0 glc")
    A("s_waitcnt lgkmcnt(0)")
    A(f"s_cmp_eq_u32 s58, {N1 - 1}")
    A(f"s_cbranch_scc0 K1_na{tag}")
    A("s_mov_b32 s58, 1")
    A("s_atomic_add s58, s[66:67], 128")
    A.label(f"K1_na{tag}")
def early(A, tag):
    pass
def phase0(A):
    code_prefetch = None
    A("s_load_dwordx2 s[4:5], s[0:1], 104")
    A("s_load_dwordx2 s[66:67], s[0:1], 96")
    if int(os.environ.get("CPF", "0")):
        A("s_getpc_b64 s[26:27]")
        A.label("K1_pc")
        A("v_lshlrev_b32 v1, 6, v0")
        A(f"s_cmp_lt_u32 s2, {int(os.environ.get('CPFN', '16'))}")
        A("s_cbranch_scc0 K1_pfskip")
        A("v_cmp_gt_u32 vcc, KC_code_end-K1_pc-4, v1")
        A("s_and_saveexec_b64 s[28:29], vcc")
        A("s_cbranch_execz K1_pfr")
        A("global_load_dword v127, v1, s[26:27]")
        A.label("K1_pfr")
        A("s_mov_b64 exec, -1")
        A.label("K1_pfskip")
    A("v_lshrrev_b32 v1, 6, v0")
    A("v_readfirstlane_b32 s65, v1")
    A(f"s_cmp_ge_u32 s2, {K1_SLAB + K1_GEMV}")
    A("s_cbranch_scc1 K1_rel")
    A(f"s_cmp_ge_u32 s2, {K1_SLAB}")
    A("s_cbranch_scc1 K1_gemv")
    A("s_load_dwordx2 s[6:7], s[0:1], 0")
    A("s_and_b32 s16, s2, 31")
    A("s_lshr_b32 s17, s2, 5")
    A("s_lshl_b32 s18, s17, 9")
    A("s_xor_b32 s20, s18, 512")
    A("s_lshl_b32 s21, s17, 5")
    A("v_lshrrev_b32 v1, 3, v0")
    A("v_xor_b32 v1, s21, v1")
    A("v_and_b32 v2, 7, v0")
    A("v_lshlrev_b32 v2, 4, v2")
    A("v_lshl_add_u32 v3, v1, 15, v2")
    A("s_lshl_b32 s19, s16, 10")
    A("v_add_u32 v3, s19, v3")
    A("s_waitcnt lgkmcnt(0)")
    srd(A, 8, 6, 0x200000)
    D = 32
    for i in range(8):
        A(f"buffer_load_dwordx4 {v(D+4*i,4)}, v3, s[8:11], {'s18' if i < 4 else 's20'} offen offset:{(i&3)*128}")
    if PST: stamp(A, 9)
    srd(A, 12, 4, 0x200000, SLAB_OFF)
    A(f"v_mul_u32_u24 v4, {RS}, v1")
    A("v_add_u32 v4, v4, v2")
    A("v_and_b32 v5, 63, v0")
    A("v_lshrrev_b32 v6, 6, v0")
    A("v_and_b32 v7, 31, v5")
    A("v_lshrrev_b32 v8, 5, v5")
    A("v_and_b32 v9, 3, v6")
    A("v_lshrrev_b32 v10, 2, v6")
    A("v_cmp_eq_u32 vcc, 0, v7")
    A("v_cndmask_b32 v11, v7, 32, vcc")
    A(f"v_mov_b32 v12, {fl(0.25)}")
    A("v_cndmask_b32 v12, v12, 0, vcc")
    A("v_cmp_eq_u32 vcc, 0, v10")
    A("v_cndmask_b32 v11, v11, v7, vcc")
    A("v_cndmask_b32 v12, v12, 0, vcc")
    A("v_cvt_f32_u32 v11, v11")
    A(f"v_mul_f32 v11, {fl(1/64)}, v11")
    A("v_lshlrev_b32 v13, 3, v8")
    A("v_cvt_f32_u32 v13, v13")
    A("v_fma_f32 v12, v11, v13, v12")
    F = 64; T = 80
    for ks in range(4):
        for j in range(8): A(f"v_fmamk_f32 v{T+j}, v11, {fl(float(16*ks+j))}, v12")
        for j in range(8): A(f"v_cos_f32 v{T+j}, v{T+j}")
        for j in range(4): A(f"v_cvt_pk_f16_f32 v{F+4*ks+j}, v{T+2*j}, v{T+2*j+1}")
    A("v_and_b32 v14, 15, v5")
    A("v_lshrrev_b32 v15, 2, v14")
    A("v_lshl_add_u32 v15, v8, 3, v15")
    A(f"v_mul_u32_u24 v15, {RS}, v15")
    A("v_bfe_u32 v16, v5, 4, 1")
    A("v_lshlrev_b32 v16, 2, v16")
    A("v_and_b32 v17, 1, v14")
    A("v_lshl_or_b32 v16, v17, 1, v16")
    A("v_bfe_u32 v17, v14, 1, 1")
    A("v_or_b32 v16, v16, v17")
    A("v_lshlrev_b32 v16, 3, v16")
    A("v_lshl_add_u32 v16, v9, 7, v16")
    A("v_add_u32 v15, v15, v16")
    A("v_lshl_add_u32 v18, v7, 1, v10")
    A("v_lshlrev_b32 v18, 15, v18")
    A("v_lshl_add_u32 v18, v9, 7, v18")
    A("v_lshl_add_u32 v18, v8, 4, v18")
    A("s_add_u32 s18, s18, s19")
    A("v_mov_b32 v20, 0\nv_mov_b32 v21, 0\nv_mov_b32 v22, 0\nv_mov_b32 v23, 0")
    A("s_mov_b32 s30, 0x3f803f80")
    for i in range(8):
        A(f"s_waitcnt vmcnt({7-i+NPF})")
        for j in range(4):
            r = D + 4*i + j
            A(f"v_dot2c_f32_bf16 v{20+(j&1)}, s30, v{r}")
            A(f"v_dot2c_f32_bf16 v{22+(j&1)}, v{r}, v{r}")
    if PST: stamp(A, 10)
    A("v_add_f32 v20, v20, v21")
    A("v_add_f32 v22, v22, v23")
    for m in ("quad_perm:[1,0,3,2]", "quad_perm:[2,3,0,1]", "row_half_mirror"):
        A(f"v_add_f32_dpp v20, v20, v20 {m} row_mask:0xf bank_mask:0xf")
        A(f"v_add_f32_dpp v22, v22, v22 {m} row_mask:0xf bank_mask:0xf")
    A(f"v_mul_f32 v20, {fl(1/512)}, v20")
    A(f"v_mul_f32 v22, {fl(1/512)}, v22")
    A("v_fma_f32 v22, -v20, v20, v22")
    A("v_max_f32 v22, 0, v22")
    A(f"v_add_f32 v22, {fl(1e-5)}, v22")
    A("v_rsq_f32 v22, v22")
    A("v_mul_f32 v20, v20, v22")
    A("v_mov_b32 v23, v22")
    A("v_sub_f32 v20, 0, v20")
    A("v_mov_b32 v21, v20")
    A("s_mov_b32 s31, 0xffff0000")
    for i in range(4):
        for j in range(4):
            r = D + 4*i + j
            t = 24 + 2*(j & 1)
            A(f"v_lshlrev_b32 v{t}, 16, v{r}")
            A(f"v_and_b32 v{t+1}, s31, v{r}")
            A(f"v_pk_fma_f32 {v(t,2)}, {v(t,2)}, v[22:23], v[20:21]")
            A(f"v_cvt_pk_f16_f32 v{r}, v{t}, v{t+1}")
        A(f"ds_write_b128 v4, {v(D+4*i,4)} offset:{128*i}")
    A("s_waitcnt lgkmcnt(0)")
    A("s_barrier")
    if PST: stamp(A, 11)
    Af = 32
    for t in range(2):
        for ks in range(4):
            for q in range(2):
                A(f"ds_read_b64_tr_b16 {v(Af+16*t+4*ks+2*q,2)}, v15 offset:{(16*ks+4*q)*RS + 64*t}")
    C = 96
    for t in range(2):
        for ks in range(4):
            A(f"s_waitcnt lgkmcnt({14-8*t-2*ks})")
            A(f"v_mfma_f32_32x32x16_f16 {v(C+16*t,16)}, {v(Af+16*t+4*ks,4)}, {v(F+4*ks,4)}, {'0' if ks==0 else v(C+16*t,16)}")
    A("v_mul_u32_u24 v19, 144, v7")
    A("v_lshl_add_u32 v19, v8, 4, v19")
    A(f"v_mul_u32_u24 v20, {32*144}, v6")
    A(f"v_add_u32 v20, {64*RS}, v20")
    A("v_add_u32 v19, v19, v20")
    A("v_lshrrev_b32 v21, 3, v5")
    A("v_mul_u32_u24 v22, 144, v21")
    A("v_add3_u32 v22, v22, v20, v2")
    A("v_lshl_add_u32 v18, v21, 1, v10")
    A("v_lshlrev_b32 v18, 15, v18")
    A("v_lshl_add_u32 v18, v9, 7, v18")
    A("v_add_u32 v18, v18, v2")
    for t in range(2):
        for j in range(8):
            A(f"v_cvt_pk_f16_f32 v{80+8*t+j}, v{C+16*t+2*j}, v{C+16*t+2*j+1}")
        A(f"ds_write_b128 v19, {v(80+8*t,4)} offset:{64*t}")
        A(f"ds_write_b128 v19, {v(84+8*t,4)} offset:{64*t+32}")
    for i in range(4): A(f"ds_read_b128 {v(32+4*i,4)}, v22 offset:{i*8*144}")
    for i in range(4):
        A(f"s_waitcnt lgkmcnt({3-i})")
        A(f"buffer_store_dwordx4 {v(32+4*i,4)}, v18, s[12:15], s18 offen sc1")
        if i < 3: A("s_add_u32 s18, s18, 0x80000")
    A("s_mov_b32 s64, 0")
    A("s_branch K1_arrive")
    A.label("K1_gemv")
    A(f"s_sub_u32 s3, s2, {K1_SLAB}")
    A.label("K1_gv0")
    A("s_load_dwordx4 s[16:19], s[0:1], 72")
    A("s_and_b32 s24, s3, 7")
    A("s_lshl_b32 s24, s24, 1")
    A("s_bfe_u32 s25, s3, 0x10003")
    A("s_add_u32 s24, s24, s25")
    A("s_andn2_b32 s3, s3, 15")
    A("s_add_u32 s3, s3, s24")
    A("v_lshrrev_b32 v1, 2, v0")
    A("v_and_b32 v2, 3, v0")
    A(f"v_mul_u32_u24 v3, {8*6144}, v1")
    A("v_lshl_add_u32 v3, v2, 4, v3")
    A("s_lshl_b32 s40, s3, 6")
    for i in range(1, 8): A(f"s_add_u32 s{40+i}, s{39+i}, 6144")
    A("v_lshlrev_b32 v4, 4, v1")
    A("s_waitcnt lgkmcnt(0)")
    srd(A, 8, 18, 512*3072*2)
    srd(A, 12, 16, 1024)
    D = 32
    A("s_cmp_lt_u32 s65, 4")
    A("s_cbranch_scc0 K1_gvnl")
    if int(os.environ.get("DLY", "0")):
        A("s_lshr_b32 s24, s3, 4")
        A("s_cmp_eq_u32 s24, 1")
        A("s_cbranch_scc1 K1_gvnd")
        A(f"s_sleep {os.environ['DLY']}")
        A.label("K1_gvnd")
    A("buffer_load_dwordx4 v[12:15], v4, s[12:15], 0 offen")
    for i in range(8): A(f"buffer_load_dwordx4 {v(D+4*i,4)}, v3, s[8:11], s{40+i} offen")
    A.label("K1_gvnl")
    if PST: stamp(A, 9)
    srd(A, 12, 4, LOW_BYTES)
    A("v_and_b32 v6, 63, v0")
    A("v_lshrrev_b32 v5, 4, v0")
    A("v_lshlrev_b32 v5, 7, v5")
    A("v_lshl_add_u32 v5, v2, 5, v5")
    A("v_and_b32 v7, 31, v0")
    A("v_bfe_u32 v8, v0, 5, 1")
    A("v_lshlrev_b32 v8, 10, v8")
    A("v_lshl_add_u32 v8, v7, 2, v8")
    for j in range(8): A(f"v_mov_b32 v{64+j}, 0")
    A("s_cmp_lt_u32 s3, 16")
    A("s_cbranch_scc0 K1_nocos")
    A("v_lshrrev_b32 v9, 6, v0")
    A("v_lshl_add_u32 v9, v9, 5, v7")
    A("v_cmp_eq_u32 vcc, 32, v0")
    A("v_mov_b32 v10, 0x100")
    A("v_cndmask_b32 v9, v9, v10, vcc")
    A("v_cvt_f32_u32 v9, v9")
    A(f"v_mul_f32 v9, {fl(1/512)}, v9")
    A("s_lshl_b32 s24, s3, 5")
    A("v_cvt_f32_u32 v10, s24")
    A("v_mul_f32 v10, v9, v10")
    for k in range(32): A(f"v_fmamk_f32 v{80+k}, v9, {fl(float(k))}, v10")
    for k in range(32): A(f"v_cos_f32 v{80+k}, v{80+k}")
    A.label("K1_nocos")
    A("s_cmp_lt_u32 s65, 4")
    A("s_cbranch_scc0 K1_gvb")
    A("s_waitcnt vmcnt(8)")
    for i in range(8):
        A(f"v_lshlrev_b32 v{16+i}, 16, v{12+(i>>1)}" if i % 2 == 0 else f"v_and_b32 v{16+i}, 0xffff0000, v{12+(i>>1)}")
        A(f"v_mul_f32 v{24+i}, {fl(-1.4426950408889634)}, v{16+i}")
    for i in range(8): A(f"v_exp_f32 v{24+i}, v{24+i}")
    for i in range(8): A(f"v_add_f32 v{24+i}, 1.0, v{24+i}")
    for i in range(8): A(f"v_rcp_f32 v{24+i}, v{24+i}")
    for i in range(8): A(f"v_mul_f32 v{16+i}, v{16+i}, v{24+i}")
    for i in range(8): A(f"v_cvt_pk_bf16_f32 v{16+i}, v{16+i}, 0")
    for i in range(8): A(f"v_lshlrev_b32 v{24+i}, 16, v{16+i}")
    for i in range(8):
        A(f"s_waitcnt vmcnt({7-i})")
        for j in range(4):
            A(f"v_dot2c_f32_bf16 v{64+2*j}, v{16+i}, v{D+4*i+j}")
            A(f"v_dot2c_f32_bf16 v{65+2*j}, v{24+i}, v{D+4*i+j}")
    if PST: stamp(A, 10)
    for m in ("row_ror:4", "row_ror:8"):
        for j in range(8): A(f"v_add_f32_dpp v{64+j}, v{64+j}, v{64+j} {m} row_mask:0xf bank_mask:0xf")
    A("s_mov_b32 exec_lo, 0x000f000f")
    A("s_mov_b32 exec_hi, 0x000f000f")
    A("ds_write_b128 v5, v[64:67]")
    A("ds_write_b128 v5, v[68:71] offset:16")
    A("s_mov_b64 exec, -1")
    A("s_waitcnt lgkmcnt(0)")
    A.label("K1_gvb")
    A("s_barrier")
    A("v_cmp_gt_u32 vcc, 64, v0")
    A("s_and_saveexec_b64 s[30:31], vcc")
    A("s_cbranch_execz K1_gv2")
    for i in range(8): A(f"ds_read_b32 v{16+i}, v8 offset:{128*i}")
    A("s_lshr_b32 s28, s3, 4")
    A("s_and_b32 s29, s3, 15")
    A("s_lshl_b32 s29, s29, 5")
    A("v_add_u32 v10, s29, v7")
    A("v_sub_u32 v11, 0x200, v10")
    A("v_and_b32 v11, 0xff, v11")
    A("v_cmp_gt_u32 vcc, 0x100, v10")
    A("v_cndmask_b32 v12, v11, v10, vcc")
    A("v_cndmask_b32 v13, 32, 0, vcc")
    A("v_lshrrev_b32 v14, 5, v12")
    A("v_and_b32 v12, 31, v12")
    A("v_lshl_add_u32 v12, v14, 6, v12")
    A("v_add_u32 v12, v12, v13")
    A("s_sub_u32 s32, s28, 2")
    A("s_cmp_lt_u32 s32, 3")
    A("s_cselect_b64 vcc, -1, 0")
    A("v_cndmask_b32 v10, v10, v12, vcc")
    A("v_lshlrev_b32 v10, 2, v10")
    A("s_lshl_b32 s33, s28, 11")
    A(f"s_add_u32 s33, s33, {MOD_OFF}")
    A("s_cmp_eq_u32 s28, 1")
    A("s_cselect_b32 s34, 1.0, 0")
    A(f"s_cselect_b32 s35, {fl(1/256)}, 1.0")
    A("s_cmp_eq_u32 s28, 4")
    A("s_cselect_b32 s34, 1.0, s34")
    A("s_cmp_eq_u32 s28, 2")
    A(f"s_cselect_b32 s35, {fl(256.0)}, s35")
    A("s_waitcnt lgkmcnt(0)")
    for st in (4, 2, 1):
        for i in range(st): A(f"v_add_f32 v{16+i}, v{16+i}, v{16+st+i}")
    A("v_mov_b32 v17, v16")
    A("v_permlane32_swap_b32 v16, v17")
    A("v_add_f32 v16, v16, v17")
    A("v_cvt_pk_bf16_f32 v16, v16, 0")
    A("v_lshlrev_b32 v16, 16, v16")
    A("v_add_f32 v16, s34, v16")
    A("v_cvt_pk_bf16_f32 v16, v16, 0")
    A("v_lshlrev_b32 v16, 16, v16")
    A("v_mul_f32 v16, s35, v16")
    A("s_mov_b32 exec_hi, 0")
    A("buffer_store_dword v16, v10, s[12:15], s33 offen sc1")
    A("ds_write_b32 v8, v16 offset:4096")
    A("s_waitcnt lgkmcnt(0)")
    A.label("K1_gv2")
    A("s_mov_b64 exec, -1")
    A("s_cmp_lt_u32 s3, 16")
    A("s_cbranch_scc0 K1_gv3")
    A("s_barrier")
    A("v_mov_b32 v9, 0")
    for k in range(8): A(f"ds_read_b128 {v(16+4*k,4)}, v9 offset:{4096+16*k}")
    A("v_lshlrev_b32 v10, 2, v0")
    A("s_lshl_b32 s24, s3, 11")
    A(f"s_add_u32 s24, s24, {SHP_OFF}")
    A("s_waitcnt lgkmcnt(0)")
    A("v_mul_f32 v12, v16, v80")
    A("v_mul_f32 v13, v17, v81")
    for k in range(2, 32): A(f"v_fmac_f32 v{12+(k&1)}, v{16+k}, v{80+k}")
    A("v_add_f32 v12, v12, v13")
    A("buffer_store_dword v12, v10, s[12:15], s24 offen sc1")
    A("s_branch K1_arrive")
    A.label("K1_gv3")
    A("s_waitcnt vmcnt(0)")
    A("s_branch K1_arr2")
    A.label("K1_rel")
    A(f"s_sub_u32 s36, s2, {K1_SLAB + K1_GEMV}")
    A("s_waitcnt lgkmcnt(0)")
    A("s_cmp_eq_u32 s65, 1")
    A("s_cbranch_scc0 K1_done")
    A("s_cmp_lt_u32 s36, 41")
    A("s_cbranch_scc0 K1_done")
    prefill(A)
    A("s_branch K1_arr3")
    A.label("K1_arrive")
    if PST: stamp(A, 12)
    A("s_waitcnt vmcnt(0)")
    if PST: stamp(A, 13)
    A("s_barrier")
    A.label("K1_arr2")
    A("s_cmp_eq_u32 s65, 0")
    A("s_cbranch_scc0 K1_done")
    A.label("K1_arr3")
    arrive(A, "s64", "z")
    A.label("K1_done")
    A("s_mov_b64 exec, -1")

def sidejob(A):
    D = 192; O = 224; AD = 144
    A(f"s_cmp_lt_u32 s2, {K1_SLAB}")
    A("s_cbranch_scc1 SJ_end")
    A(f"s_cmp_lt_u32 s2, {K1_SLAB + K1_GEMV}")
    A("s_cbranch_scc0 SJ_r")
    A(f"s_add_u32 s52, s2, {576 - K1_SLAB}")
    A("s_cmp_eq_u32 s3, 7")
    A("s_cbranch_scc0 SJ_end")
    A("s_branch SJ_go")
    A.label("SJ_r")
    A("s_cmp_lt_u32 s3, 2")
    A("s_cbranch_scc1 SJ_end")
    A("s_mul_i32 s52, s3, 96")
    A("s_add_u32 s52, s52, s2")
    A(f"s_sub_u32 s52, s52, {192 + K1_SLAB + K1_GEMV}")
    if int(os.environ.get("DLY", "0")): A(f"s_sleep {os.environ['DLY']}")
    A.label("SJ_go")
    A("s_load_dwordx4 s[16:19], s[0:1], 48")
    A("s_load_dwordx2 s[14:15], s[0:1], 64")
    A("s_cmp_ge_u32 s52, 448")
    A("s_cbranch_scc1 SJ_d")
    A("v_mov_b32 v130, v5")
    A("s_lshr_b32 s44, s52, 5")
    A("s_and_b32 s45, s52, 31")
    A("s_lshr_b32 s46, s45, 2")
    A("s_lshl_b32 s46, s46, 5")
    A("s_and_b32 s47, s45, 1")
    A("s_lshl_b32 s47, s47, 4")
    A("s_add_u32 s46, s46, s47")
    A("v_lshl_add_u32 v131, v4, 3, s46")
    A("s_bitcmp1_b32 s45, 1")
    A("s_cbranch_scc1 SJ_mir")
    for r in range(8): A(f"s_mov_b32 s{28+r}, {r*3584}")
    A("v_mov_b32 v132, v131")
    A("s_branch SJ_gu2")
    A.label("SJ_mir")
    for r in range(8): A(f"s_mov_b32 s{28+r}, {(7-r)*3584}")
    A("v_sub_u32 v131, 505, v131")
    A("v_cmp_eq_u32 vcc, 505, v131")
    A("v_mov_b32 v132, 249")
    A("v_cndmask_b32 v132, v131, v132, vcc")
    A.label("SJ_gu2")
    A("v_mul_u32_u24 v131, 3584, v131")
    A("v_mul_u32_u24 v132, 3584, v132")
    A("s_lshl_b32 s46, s44, 8")
    A("v_and_b32 v133, 15, v3")
    A("v_lshl_add_u32 v133, v133, 4, s46")
    A("v_add_u32 v131, v131, v133")
    A("v_add_u32 v132, v132, v133")
    A("s_and_b32 s46, s44, 1")
    A(f"s_mul_i32 s46, s46, {WQC}")
    A("s_lshr_b32 s47, s44, 1")
    A("s_lshl_b32 s47, s47, 15")
    A("s_add_u32 s46, s46, s47")
    A("s_lshl_b32 s47, s45, 10")
    A("s_add_u32 s54, s46, s47")
    for q in range(1, 8): A(f"s_add_u32 s{54+q}, s{53+q}, {2*WQC}")
    A("s_waitcnt lgkmcnt(0)")
    A("v_cmp_gt_u32 vcc, 16, v3")
    A("v_mov_b32 v134, s18")
    A("v_mov_b32 v135, s16")
    A("v_cndmask_b32 v134, v134, v135, vcc")
    A("v_mov_b32 v135, s19")
    A("v_mov_b32 v136, s17")
    A("v_cndmask_b32 v135, v135, v136, vcc")
    A("s_branch SJ_ld")
    A.label("SJ_d")
    A("s_sub_u32 s52, s52, 448")
    A("s_and_b32 s44, s52, 7")
    A("s_lshr_b32 s45, s52, 4")
    A("s_bfe_u32 s46, s52, 0x10003")
    A("s_lshl_b32 s47, s45, 7")
    A("s_add_u32 s47, s47, s44")
    A("v_lshl_add_u32 v131, v4, 5, s47")
    A("v_lshlrev_b32 v131, 10, v131")
    A("s_lshl_b32 s47, s46, 9")
    A("v_lshl_add_u32 v133, v3, 4, s47")
    A("v_add_u32 v131, v131, v133")
    A("v_mov_b32 v132, v131")
    A("v_lshrrev_b32 v130, 3, v3")
    A("v_mul_u32_u24 v130, 28672, v130")
    A("v_lshl_add_u32 v130, v4, 9, v130")
    A("v_and_b32 v133, 7, v3")
    A("v_lshl_add_u32 v130, v133, 4, v130")
    for r in range(8): A(f"s_mov_b32 s{28+r}, {(64*(r>>2) + 8*(r&3))*1024}")
    A(f"s_mul_i32 s44, s44, {WQC}")
    A(f"s_mul_i32 s46, s46, {4*28672}")
    A("s_add_u32 s44, s44, s46")
    A("s_lshl_b32 s45, s45, 11")
    A("s_add_u32 s44, s44, s45")
    for q in range(8): A(f"s_add_u32 s{54+q}, s44, {WQD + (q>>2)*1024 + (q&3)*128}")
    A("s_waitcnt lgkmcnt(0)")
    A("v_mov_b32 v134, s14")
    A("v_mov_b32 v135, s15")
    A.label("SJ_ld")
    for r in range(8):
        A(f"v_add_u32 v133, s{28+r}, {'v132' if r == 0 else 'v131'}")
        A(f"v_add_co_u32 v{AD+2*r}, vcc, v134, v133")
        A(f"v_addc_co_u32 v{AD+1+2*r}, vcc, 0, v135, vcc")
        A(f"global_load_dwordx4 {v(D+4*r,4)}, {v(AD+2*r,2)}, off")
    srd(A, 12, 4, WQ_BYTES, WQ_OFF)
    A("s_mov_b32 s48, 0x05040100")
    A("s_mov_b32 s49, 0x07060302")
    for rp in range(4):
        A(f"s_waitcnt vmcnt({6-2*rp})")
        for c in range(4):
            A(f"v_perm_b32 v{O+8*c+rp}, v{D+8*rp+4+c}, v{D+8*rp+c}, s48")
            A(f"v_perm_b32 v{O+8*c+4+rp}, v{D+8*rp+4+c}, v{D+8*rp+c}, s49")
    for q in range(8):
        A(f"buffer_store_dwordx4 {v(O+4*q,4)}, v130, s[12:15], s{54+q} offen sc1")
    A.label("SJ_end")
```

```python
import sys
from gen_common import *
from gen_km import *
REF = open("adaLN_cond__spectral_fnet__geglu_ffn__prompt.s.ref").read().split("\n")
hdr = [l for l in REF if l.startswith(";") and "@launch" not in l]
n = "adaLN_cond__spectral_fnet__geglu_ffn__prompt_kernel"
out = "\n".join(hdr) + "\n"
out += f"; @launch grid=(256,1,1) block=(512,1,1) lds={KC_LDS}\n"
out += '.amdgcn_target "amdgcn-amd-amdhsa--gfx950"\n.text\n'
out += kern_head(n) + gen_km().render()
out += '.section .rodata,"a"\n' + kern_desc(n, 256)
path = sys.argv[1] if len(sys.argv) > 1 else "k.s"
open(path, "w").write(out)
print("wrote", path, len(out))
```

```python
from asmlib import *
import struct, os
def fl(x): return "0x%08x" % struct.unpack("<I", struct.pack("<f", x))[0]

SLAB_OFF = 0
MOD_OFF  = 0x200000
SHP_OFF  = 0x204000
FLAG_OFF = 0x210000
F2_REL   = 0x8000
F3_REL   = 0x10000
FLAG_BYTES = 0x10000
STS_OFF  = 0x280000
LOW_BYTES = 0x300000
WQ_OFF   = 0x400000
WQ_CHUNK = 688128
WQ_P2    = 458752
WQC      = 229376
WQD      = 16 * WQC
WQ_BYTES = 24 * WQC
X1_OFF   = 0xA00000
H2_REL   = 0x200000
ACT_OFF  = 0xE00000
ACT_BYTES = 256 * 28672

def srd(A, d, base, nbytes, add=0):
    if add:
        A(f"s_add_u32 s{d}, s{base}, {hex(add)}")
        A(f"s_addc_u32 s{d+1}, s{base+1}, 0")
    else:
        A(f"s_mov_b32 s{d}, s{base}")
        A(f"s_mov_b32 s{d+1}, s{base+1}")
    A(f"s_mov_b32 s{d+2}, {hex(nbytes)}")
    A(f"s_mov_b32 s{d+3}, 0x20000")

def kern_head(name):
    return f".globl {name}\n.p2align 8\n.type {name},@function\n{name}:\n"

def kern_desc(name, vgpr, sgpr=102, accum=None):
    accum = accum or ((vgpr + 3) // 4 * 4)
    return f""".p2align 6
.amdhsa_kernel {name}
  .amdhsa_next_free_vgpr {vgpr}
  .amdhsa_next_free_sgpr {sgpr}
  .amdhsa_accum_offset {accum}
  .amdhsa_group_segment_fixed_size 0
  .amdhsa_kernarg_size 112
  .amdhsa_user_sgpr_count 2
  .amdhsa_user_sgpr_kernarg_segment_ptr 1
  .amdhsa_system_sgpr_workgroup_id_x 1
.end_amdhsa_kernel
"""

STAMPS = int(os.environ.get("STAMPS", "0"))
STAMP_OFF = 0x8000000
ST0 = 72
def stamp(A, k, force=False):
    if STAMPS == 1 or (STAMPS and (k == 0 or force)):
        A("s_memtime s[94:95]" if os.environ.get("STCLK") else "s_memrealtime s[94:95]")
        A("s_waitcnt lgkmcnt(0)")
        A(f"s_mov_b32 s{ST0+k}, s94")
def stamp_init(A, n):
    if STAMPS:
        for k in range(n): A(f"s_mov_b32 s{ST0+k}, 0")
def stamp_flush(A, kern, n, tid="v0"):
    if not STAMPS: return
    stamp(A, n - 1, True)
    if os.environ.get("DBGST"):
        A("s_load_dwordx2 s[96:97], s[0:1], 96")
        A("s_mov_b64 exec, 1")
        A("v_mov_b32 v1, 0")
        A("s_waitcnt lgkmcnt(0)")
        A(f"s_not_b32 s94, s{ST0}")
        A("v_mov_b32 v2, s94")
        A("global_atomic_umax v1, v2, s[96:97] offset:4")
        for i, k in enumerate((0, 17, 19, 2, 3, 7, 9, 10, 13, 20, 21)):
            A(f"v_mov_b32 v{3+i}, s{ST0+k}")
            A(f"global_atomic_umax v1, v{3+i}, s[96:97] offset:{8+4*i}")
        return
    A("s_mov_b64 exec, -1")
    srd(A, 96, 4, 0x1000000, STAMP_OFF + kern * 0x100000)
    A(f"v_lshrrev_b32 v1, 6, {tid}")
    A("v_lshlrev_b32 v1, 7, v1")
    A("s_lshl_b32 s94, s2, 10")
    A("s_mov_b64 exec, 1")
    for k in range(n):
        A(f"v_mov_b32 v2, s{ST0+k}")
        A(f"buffer_store_dword v2, v1, s[96:99], s94 offen offset:{4*k}")
```

```python
from gen_common import *
from gen_p0 import phase0, sidejob, ticket
import math

MATL = 65536
ZL = 131072
SHL = ZL + 8192
STATL = SHL + 256
GOL = STATL + 1024
PSTL = GOL + 64
KC_LDS = PSTL + 8192
REDL = 65536; RCH = 1056; RSRC = 8 * RCH
W = 128
E = lambda k, d: int(os.environ.get(k, str(d)))
W0 = E("W0", 4)
LG = E("LG", 8)
HG = E("HG", 16)
W7E = E("W7E", 8)
PK_ = E("PK", 18)
N2PRE = E("N2PRE", 0)
TCH = 0
BPB = E("BPB", 0)
LDL = 0
LWE = E("LWE", 0)
SLG = E("SLG", 2)
HW1 = E("HW1", 16)
TKT = E("TKT", 1)
SDL = E("SDL", 1)
H2B = E("H2B", 1)
HK = E("HK", 7)
SL1 = E("SL1", 2); SL2 = E("SL2", 4)
SPIN = 100000

def gen_km():
    A = Asm()
    A("s_cmp_ge_u32 s2, 256")
    A("s_cbranch_scc1 KC_end")
    stamp_init(A, 22); stamp(A, 0)
    phase0(A)
    stamp(A, 17)
    if int(os.environ.get("P0ST", "0")):
        stamp_flush(A, 0, 22)
        A("s_endpgm")
    A("s_mov_b32 s3, s65")
    A("v_and_b32 v2, 63, v0")
    A("v_and_b32 v3, 31, v2")
    A("v_lshrrev_b32 v4, 5, v2")
    A("v_lshlrev_b32 v5, 4, v2")
    sidejob(A)
    stamp(A, 16)
    if TKT: ticket(A, GOL + 32)
    A("s_mov_b64 s[50:51], s[66:67]")
    A("s_load_dwordx2 s[4:5], s[0:1], 104")
    A("s_load_dwordx2 s[6:7], s[0:1], 0")
    A("s_load_dwordx2 s[68:69], s[0:1], 88")
    A("v_lshrrev_b32 v1, 6, v0")
    A("v_readfirstlane_b32 s3, v1")
    A("s_bfe_u32 s20, s2, 0x30003")
    A("s_and_b32 s21, s2, 7")
    A("s_lshl_b32 s21, s21, 2")
    A("s_lshr_b32 s22, s2, 6")
    A("s_add_u32 s21, s21, s22")
    A("v_and_b32 v2, 63, v0")
    A("v_and_b32 v3, 31, v2")
    A("v_lshrrev_b32 v4, 5, v2")
    A("v_lshlrev_b32 v5, 4, v2")
    A("v_lshlrev_b32 v6, 5, v2")
    A("s_add_u32 s70, s3, s20")
    A("s_and_b32 s70, s70, 7")
    A("s_lshl_b32 s25, s3, 13")
    A("s_lshl_b32 s26, s70, 13")
    CA = 64; X = 72; Y = 80
    A("s_and_b32 s22, s70, 1")
    A("s_lshl_b32 s22, s22, 3")
    for i in range(8):
        A(f"s_add_u32 s24, s22, {i}")
        A(f"v_xor_b32 v{Y+i}, s24, v2")
        A(f"v_lshlrev_b32 v{Y+i}, 4, v{Y+i}")
    A("s_lshl_b32 s24, s21, 16")
    A("s_add_u32 s24, s24, s26")
    A(f"s_mov_b32 s27, {MOD_OFF + 2048}")
    A("s_mov_b32 m0, s26")
    def dma_issue():
        A("s_waitcnt lgkmcnt(0)")
        srd(A, 8, 4, LOW_BYTES, 0)
        A(f"buffer_load_dwordx4 {v(CA,4)}, v6, s[8:11], s27 offen")
        A(f"buffer_load_dwordx4 {v(CA+4,4)}, v6, s[8:11], s27 offen offset:16")
        for i in range(4):
            A(f"buffer_load_dwordx4 v{Y+i}, s[8:11], s24 offen offset:{i*1024} lds")
        A("s_add_u32 s24, s24, 4096")
        A("s_add_u32 m0, s26, 4096")
        for i in range(4, 8):
            A(f"buffer_load_dwordx4 v{Y+i}, s[8:11], s24 offen offset:{(i&3)*1024} lds")
    def gowait(tag, off):
        A(f"s_mov_b32 s47, {SPIN}")
        A("v_mov_b32 v12, 0")
        A.label(f"KC_gw{tag}")
        A(f"global_load_dword v13, v12, s[50:51] offset:{128 + off} sc1")
        A("s_waitcnt vmcnt(0)")
        A("v_cmp_eq_u32 vcc, 1, v13")
        A(f"s_cbranch_vccnz KC_gg{tag}")
        if SLG: A(f"s_sleep {SLG}")
        A("s_sub_u32 s47, s47, 1")
        A(f"s_cbranch_scc0 KC_gw{tag}")
        A.label(f"KC_gg{tag}")
    G = 32; GX = 56; P = 88; DK = 24; K2 = 16
    Gr = lambda i: G + 8*(i % 3)
    A("v_lshlrev_b32 v8, 3, v2")
    A("v_cvt_f32_u32 v8, v8")
    A(f"v_mul_f32 v{DK}, {fl(1/512)}, v8")
    for k in range(1, 8): A(f"v_add_f32 v{DK+k}, {fl(k/512)}, v{DK}")
    A("s_and_b32 s28, s3, 3")
    A("s_lshl_b32 s28, s28, 3")
    A("s_lshl_b32 s29, s20, 5")
    A("s_add_u32 s28, s28, s29")
    A("s_cmp_lt_u32 s3, 4")
    A(f"s_cselect_b32 s29, 0, {fl(0.25)}")
    A("s_lshl_b32 s30, s20, 3")
    A("s_add_u32 s30, s30, s3")
    A("s_cmp_eq_u32 s30, 4")
    A("s_cselect_b32 s31, 0x100, s28")
    A("s_cselect_b32 s32, 0, s29")
    A("v_cvt_f32_u32 v9, s31")
    A("v_cvt_f32_u32 v10, s28")
    for k in range(8): A(f"v_cos_f32 v{K2+k}, v{DK+k}")
    for k in range(8): A(f"v_fma_f32 v{GX+k}, v{DK+k}, v9, s32")
    for k in range(8): A(f"v_fma_f32 v{G+k}, v{DK+k}, v10, s29")
    for k in range(8): A(f"v_add_f32 v{G+8+k}, v{G+k}, v{DK+k}")
    for k in range(8): A(f"v_cos_f32 v{GX+k}, v{GX+k}")
    for k in range(16): A(f"v_cos_f32 v{G+k}, v{G+k}")
    for k in range(8): A(f"v_add_f32 v{K2+k}, v{K2+k}, v{K2+k}")
    XD = 120; GA = 104; XS = 14
    A("s_and_b32 s36, s3, 1")
    A("s_bfe_u32 s37, s3, 0x10001")
    A("s_cmp_lt_u32 s3, 4")
    A("s_cbranch_scc1 KC_noxl")
    A("s_waitcnt lgkmcnt(0)")
    A("v_lshlrev_b32 v7, 6, v3")
    A("v_add_u32 v7, s21, v7")
    A("s_cmp_eq_u32 s36, 0")
    A("s_cbranch_scc1 KC_tok_done")
    A("v_add_u32 v8, 32, v7")
    A("v_sub_u32 v7, 0x800, v7")
    A("s_cmp_eq_u32 s21, 0")
    A("s_cselect_b64 vcc, -1, 0")
    A("v_cndmask_b32 v7, v7, v8, vcc")
    A.label("KC_tok_done")
    srd(A, 40, 6, 0x200000)
    A("v_lshlrev_b32 v8, 10, v7")
    A("s_lshl_b32 s38, s20, 6")
    A("v_lshl_add_u32 v9, v4, 4, s38")
    A("v_sub_u32 v10, 1008, v9")
    A("s_cmp_eq_u32 s37, 0")
    A("s_cselect_b64 vcc, -1, 0")
    A("s_cselect_b32 s44, 32, -32")
    A("v_cndmask_b32 v10, v10, v9, vcc")
    A("v_add_u32 v10, v8, v10")
    A("v_add_u32 v11, s44, v10")
    A(f"buffer_load_dwordx4 {v(XD,4)}, v10, s[40:43], 0 offen")
    A(f"buffer_load_dwordx4 {v(XD+4,4)}, v11, s[40:43], 0 offen")
    A(f"buffer_load_ushort v{XS+1}, v11, s[40:43], 0 offen offset:16")
    A("v_sub_u32 v11, 0x400, v9")
    A("v_cmp_eq_u32 vcc, 0, v9")
    A("v_mov_b32 v12, 0x200")
    A("s_lshl_b32 s39, s20, 8")
    A("v_cndmask_b32 v11, v11, v12, vcc")
    A("v_add_u32 v11, v8, v11")
    A(f"buffer_load_ushort v{XS}, v11, s[40:43], 0 offen")
    A.label("KC_noxl")
    A("s_and_b32 s22, s3, 1")
    A("s_lshl_b32 s22, s22, 3")
    A(f"s_add_u32 s30, s25, {MATL}")
    for i in range(8):
        A(f"s_add_u32 s24, s22, {i}")
        A(f"v_xor_b32 v{X+i}, s24, v2")
        A(f"v_lshl_add_u32 v{X+i}, v{X+i}, 4, s30")
    A("s_lshl_b32 s24, s21, 16")
    A("s_add_u32 s24, s24, s26")
    A("s_cmp_eq_u32 s3, 0")
    A("s_cbranch_scc0 KC_b0")
    gowait("1", 0)
    A.label("KC_b0")
    A("s_barrier")
    stamp(A, 19)
    dma_issue()
    A(f"v_mov_b32 v12, {GOL}")
    A("v_mov_b32 v128, 0\nv_mov_b32 v129, 0\nv_mov_b32 v130, 0\nv_mov_b32 v131, 0")
    A("ds_write_b128 v12, v[128:131]")
    A("ds_write_b128 v12, v[128:131] offset:16")
    A("s_waitcnt vmcnt(8)")
    A("s_barrier")
    A("s_cmp_eq_u32 s3, 0")
    A("s_cbranch_scc0 KC_nodw")
    A("s_and_b32 s46, s2, 15")
    A("s_lshl_b32 s46, s46, 7")
    A("s_lshr_b32 s47, s2, 4")
    A("s_lshl_b32 s47, s47, 2")
    A("s_add_u32 s46, s46, s47")
    A(f"s_add_u32 s46, s46, {FLAG_OFF + F3_REL}")
    A("v_mov_b32 v12, 0")
    A("v_mov_b32 v13, 1")
    A("s_mov_b64 exec, 1")
    A("buffer_store_dword v13, v12, s[8:11], s46 offen sc1")
    A("s_mov_b64 exec, -1")
    A.label("KC_nodw")
    for base in (GX, G, G + 8):
        for j in range(4): A(f"v_pk_mul_f32 {v(base+2*j,2)}, {v(base+2*j,2)}, {v(CA+2*j,2)}")
    PP = [88, 92, 96, 100]
    for i in range(8):
        if i >= 2:
            for j in range(4):
                A(f"v_pk_fma_f32 {v(Gr(i)+2*j,2)}, {v(K2+2*j,2)}, {v(Gr(i-1)+2*j,2)}, {v(Gr(i-2)+2*j,2)} neg_lo:[0,0,1] neg_hi:[0,0,1]")
        src = GX if i == 0 else Gr(i)
        if i >= 4: A("s_waitcnt lgkmcnt(3)")
        for j in range(4): A(f"v_cvt_pk_f16_f32 v{PP[i&3]+j}, v{src+2*j}, v{src+2*j+1}")
        A(f"ds_write_b128 v{X+i}, {v(PP[i&3],4)} offset:{i*1024}")
    A("s_and_b32 s60, s2, 3")
    A("s_lshl_b32 s60, s60, 2")
    A("s_bfe_u32 s22, s2, 0x20003")
    A("s_add_u32 s60, s60, s22")
    A("s_lshr_b32 s66, s2, 5")
    A("s_bfe_u32 s61, s2, 0x10002")
    A("s_lshl_b32 s61, s61, 3")
    A("s_add_u32 s61, s61, s66")
    A("s_lshl_b32 s61, s61, 1")
    A("s_and_b32 s22, s60, 1")
    A("s_add_u32 s61, s61, s22")
    srd(A, 12, 4, WQ_BYTES, WQ_OFF)
    srd(A, 16, 4, 0x400000, X1_OFF)
    A(f"s_mul_i32 s62, s60, {WQC}")
    A("s_lshl_b32 s22, s3, 15")
    A("s_add_u32 s62, s62, s22")
    A("s_lshl_b32 s63, s66, 12")
    A("s_add_u32 s64, s62, s63")
    A("s_and_b32 s67, s60, 2")
    A("s_lshl_b32 s67, s67, 1")
    A("s_add_u32 s67, s67, s3")
    A("s_and_b32 s67, s67, 7")
    A("s_lshl_b32 s22, s21, 1")
    A("s_add_u32 s70, s70, s22")
    A("s_and_b32 s70, s70, 7")
    A(f"s_mul_i32 s65, s70, {WQC}")
    A("s_mul_i32 s22, s20, 28672")
    A("s_add_u32 s65, s65, s22")
    A(f"s_add_u32 s65, s65, {WQD}")
    A("s_mov_b32 s58, 0xffff0000")
    A("s_mov_b32 s59, 0x3f803f80")
    def wload(i):
        A(f"buffer_load_dwordx4 {v(W+4*i,4)}, v5, s[12:15], s64 offen offset:{(i&3)*1024}")
        if (i & 3) == 3 and i < 31:
            A("s_add_u32 s63, s63, 4096")
            A("s_and_b32 s63, s63, 0x7fff")
            A("s_add_u32 s64, s62, s63")
    DRQ = [16, 20, 24, 28, 32, 36, 40, 44, 48, 52, 56, 60, 88, 92, 80, 84,
           64, 68, 72, 76, 96, 100, 104, 108, 112, 116, 120, 124]
    DR = lambda lam, t: DRQ[2*lam + t]
    def dload(lam, lds=None, base="s65"):
        ft = lam % 7; vo = "v14" if lam < 7 else "v15"
        A(f"s_add_u32 s71, {base}, {ft*4096}")
        if lds is not None: A(f"s_add_u32 m0, s55, {lds}")
        for t in range(2):
            if lds is None: A(f"buffer_load_dwordx4 {v(DR(lam,t),4)}, {vo}, s[12:15], s71 offen offset:{t*1024}")
            else: A(f"buffer_load_dwordx4 {vo}, s[12:15], s71 offen offset:{t*1024} lds")
    def ldswait(tag, off, val):
        A(f"s_mov_b32 s47, {SPIN}")
        A.label(f"KC_ls{tag}")
        A(f"ds_read_b32 v12, v10 offset:{off}")
        A("s_sub_u32 s47, s47, 1")
        A(f"s_cbranch_scc1 KC_lg{tag}")
        A("s_waitcnt lgkmcnt(0)")
        A(f"v_cmp_le_u32 vcc, {val}, v12")
        A(f"s_cbranch_vccnz KC_lg{tag}")
        A("s_sleep 1")
        A(f"s_branch KC_ls{tag}")
        A.label(f"KC_lg{tag}")
    def side_addr():
        A("s_and_b32 s22, s21, 1")
        A("s_lshl_b32 s22, s22, 11")
        A("v_add_u32 v14, s22, v5")
        A("v_xor_b32 v15, 0x800, v14")
    stamp(A, 1)
    A("s_cmp_ge_u32 s3, 4")
    A("s_cbranch_scc1 KC_hi")
    AB, BB = 112, 120
    A("v_and_b32 v14, 15, v3")
    A("v_lshlrev_b32 v15, 10, v3")
    A("s_lshl_b32 s46, s36, 15")
    A("v_add_u32 v15, s46, v15")
    A("v_and_b32 v16, 19, v3")
    A("v_bfe_u32 v17, v3, 2, 1")
    A("v_lshl_or_b32 v16, v17, 3, v16")
    A("v_bfe_u32 v17, v3, 3, 1")
    A("v_lshl_or_b32 v16, v17, 2, v16")
    A("v_and_b32 v17, 15, v16")
    A("v_lshlrev_b32 v18, 10, v16")
    A("s_lshl_b32 s46, s37, 15")
    A(f"s_add_u32 s46, s46, {MATL}")
    A("v_add_u32 v18, s46, v18")
    A("v_xor_b32 v14, v14, v4")
    A("v_xor_b32 v17, v17, v4")
    for b in range(8):
        A(f"v_xor_b32 v19, {2*b}, v14")
        A(f"v_lshl_add_u32 v{AB+b}, v19, 4, v15")
        A(f"v_xor_b32 v19, {2*b}, v17")
        A(f"v_lshl_add_u32 v{BB+b}, v19, 4, v18")
    A("s_lshl_b32 s46, s3, 11")
    A(f"s_add_u32 s46, s46, {ZL}")
    A("v_add_u32 v19, s46, v5")
    A("s_waitcnt vmcnt(0) lgkmcnt(0)")
    A("s_barrier")
    stamp(A, 2)
    C = 64; FA = 32; FB = 48; DEP = 4
    def rd(ks):
        b, a_ = ks & 7, ks >> 3
        A(f"ds_read_b128 {v(FA+4*(ks%DEP),4)}, v{AB+b} offset:{a_*256}")
        A(f"ds_read_b128 {v(FB+4*(ks%DEP),4)}, v{BB+b} offset:{a_*256}")
    for ks in range(DEP - 1): rd(ks)
    for ks in range(32):
        if ks + DEP - 1 < 32: rd(ks + DEP - 1)
        out = min(DEP - 1, 31 - ks)
        A(f"s_waitcnt lgkmcnt({2*out})")
        A(f"v_mfma_f32_32x32x16_f16 {v(C,16)}, {v(FA+4*(ks%DEP),4)}, {v(FB+4*(ks%DEP),4)}, {'0' if ks==0 else v(C,16)}")
    for k in range(8):
        A(f"v_cvt_pk_f16_f32 v{24+k}, v{C+2*k}, v{C+2*k+1}")
    A("ds_write_b128 v19, v[24:27]")
    A("ds_write_b128 v19, v[28:31] offset:1024")
    A("s_waitcnt lgkmcnt(0)")
    A("s_barrier")
    stamp(A, 3)
    A(f"v_mov_b32 v10, {GOL}")
    A("s_cmp_eq_u32 s3, 0")
    A("s_cbranch_scc0 KC_lw")
    A("v_and_b32 v12, 3, v2")
    A("v_lshlrev_b32 v12, 4, v12")
    A("v_lshrrev_b32 v13, 2, v2")
    A("v_lshl_add_u32 v12, v13, 7, v12")
    A(f"s_mov_b32 s46, {FLAG_OFF + F3_REL + 0}")
    A(f"s_mov_b32 s47, {SPIN}")
    A.label("KC_gw2")
    A("buffer_load_dwordx4 v[128:131], v12, s[8:11], s46 offen sc1")
    A("s_waitcnt vmcnt(0)")
    A("v_and_b32 v128, v128, v129")
    A("v_and_b32 v130, v130, v131")
    A("v_and_b32 v128, v128, v130")
    A("v_cmp_ne_u32 vcc, 1, v128")
    A("s_cbranch_vccz KC_gg2")
    A("s_sub_u32 s47, s47, 1")
    A("s_cbranch_scc0 KC_gw2")
    A.label("KC_gg2")
    A("v_mov_b32 v12, 1")
    A("ds_write_b32 v10, v12 offset:20")
    A("s_branch KC_lgw1")
    A.label("KC_lw")
    ldswait("w1", 20, 1)
    stamp(A, 18)
    for i in range(32): wload(i)
    A("s_branch KC_ffn")
    A.label("KC_hi")
    A("s_setprio 1")
    A.label("KC_b1h")
    A("s_waitcnt vmcnt(0) lgkmcnt(0)")
    A.label("KC_b1h2")
    A("s_barrier")
    stamp(A, 2)
    A("s_lshl_b32 s39, s20, 8")
    A("s_lshl_b32 s44, s37, 7")
    A("s_add_u32 s44, s39, s44")
    A(f"s_add_u32 s44, s44, {MOD_OFF + 4096}")
    A("v_lshlrev_b32 v12, 5, v4")
    for q in range(2):
        for z in range(2):
            A(f"buffer_load_dwordx4 {v(GA+8*q+4*z,4)}, v12, s[8:11], s44 offen offset:{64*q+16*z}")
    A("s_cmp_eq_u32 s3, 7")
    A("s_cbranch_scc1 KC_h7")
    A("s_branch KC_nosl")
    A.label("KC_h7")
    if TCH == 2:
        A("s_lshr_b32 s26, s2, 3")
        A(f"s_mul_i32 s26, s26, {7*8192}")
        A(f"s_add_u32 s26, s26, {WQD}")
        A("v_lshlrev_b32 v8, 7, v2")
        A("s_waitcnt vmcnt(0)")
        for z in range(7):
            A(f"buffer_load_dword v{160+z}, v8, s[12:15], s26 offen")
            A("s_add_u32 s26, s26, 8192")
    A("s_cmp_eq_u32 s21, 0")
    A("s_cbranch_scc0 KC_nosl")
    A("v_lshlrev_b32 v8, 2, v2")
    A("s_lshl_b32 s39, s20, 8")
    A(f"s_add_u32 s39, s39, {SHP_OFF}")
    for k in range(16):
        A(f"buffer_load_dword v{128+k}, v8, s[8:11], s39 offen offset:{(k&1)*2048}")
        if k & 1: A("s_add_u32 s39, s39, 4096")
    A.label("KC_nosl")
    CT = 24; ST = 40; M = 56
    A("v_cvt_f32_u32 v9, v7")
    A(f"v_mul_f32 v9, {fl(1/2048)}, v9")
    A("v_lshlrev_b32 v10, 2, v4")
    A("v_cvt_f32_u32 v10, v10")
    A("v_mul_f32 v10, v9, v10")
    for k in range(16):
        s2c = 16*(k >> 3) + 8*((k >> 2) & 1) + (k & 3)
        A(f"v_fmamk_f32 v{ST+k}, v9, {fl(float(s2c))}, v10")
    for k in range(16):
        A(f"v_cos_f32 v{CT+k}, v{ST+k}")
        A(f"v_sin_f32 v{ST+k}, v{ST+k}")
    for k in range(8):
        A(f"v_cvt_pk_f16_f32 v{M+k}, v{CT+2*k}, v{CT+2*k+1}")
        A(f"v_cvt_pk_f16_f32 v{M+16+k}, v{ST+2*k}, v{ST+2*k+1}")
    A("v_lshlrev_b32 v13, 10, v4")
    A("v_lshl_add_u32 v13, v3, 4, v13")
    A("s_lshl_b32 s45, s21, 16")
    A("s_lshl_b32 s46, s20, 13")
    A("s_add_u32 s45, s45, s46")
    A("s_lshl_b32 s46, s37, 12")
    A("s_add_u32 s45, s45, s46")
    A("s_lshl_b32 s46, s36, 9")
    A("s_add_u32 s45, s45, s46")
    A("s_mov_b32 s52, 0x80008000")
    A("s_cmp_eq_u32 s36, 0")
    A("s_cselect_b32 s53, 0, s52")
    A("s_cselect_b32 s56, -1, 0")
    A("s_cselect_b32 s57, 0, -1")
    A("s_cmp_eq_u32 s37, 0")
    A("s_cselect_b32 s54, 0, s52")
    A("s_xor_b32 s55, s53, s54")
    A("s_xor_b32 s55, s55, s52")
    A(f"v_add_u32 v1, {ZL}, v5")
    A("s_lshl_b32 s46, s20, 1")
    A("s_add_u32 s46, s46, s37")
    A("s_cmp_eq_u32 s46, 1")
    A("s_cselect_b32 s46, 4096, 0")
    A("v_cmp_eq_u32 vcc, 0, v3")
    A("v_mov_b32 v6, s46")
    A("v_cndmask_b32 v6, 0, v6, vcc")
    A("v_add_u32 v6, v6, v1")
    A("s_cmp_eq_u32 s21, 0")
    A("s_cbranch_scc1 KC_mspec")
    for k in range(8):
        A(f"v_xor_b32 v{M+8+k}, s53, v{M+16+k}")
        A(f"v_xor_b32 v{M+24+k}, s55, v{M+k}")
        A(f"v_xor_b32 v{M+16+k}, s54, v{M+16+k}")
    A("s_branch KC_mdone")
    A.label("KC_mspec")
    for k in range(8):
        A(f"v_xor_b32 v{M+16+k}, s54, v{M+16+k}")
        A(f"v_and_b32 v{M+8+k}, s57, v{M+k}")
        A(f"v_and_b32 v{M+k}, s56, v{M+k}")
        A(f"v_and_b32 v{M+24+k}, s57, v{M+16+k}")
        A(f"v_and_b32 v{M+16+k}, s56, v{M+16+k}")
    A("s_cmp_eq_u32 s3, 7")
    A("s_cbranch_scc0 KC_mdone")
    A("s_waitcnt vmcnt(0)")
    for st in (8, 4, 2, 1):
        for i in range(st): A(f"v_add_f32 v{128+i}, v{128+i}, v{128+st+i}")
    A("v_lshlrev_b32 v8, 2, v2")
    A(f"v_add_u32 v8, {SHL}, v8")
    A("ds_write_b32 v8, v128")
    A("s_waitcnt lgkmcnt(0)")
    A.label("KC_mdone")
    XU = 16
    A("s_cmp_eq_u32 s3, 7")
    A("s_cbranch_scc0 KC_xw")
    if TCH != 2: A("s_waitcnt vmcnt(0)")
    A("s_branch KC_xw2")
    A.label("KC_xw")
    A("s_waitcnt vmcnt(0)")
    A.label("KC_xw2")
    A("s_cmp_eq_u32 s37, 0")
    A("s_cbranch_scc0 KC_xum")
    for k in range(8):
        A(f"v_lshlrev_b32 v{XU+2*k}, 16, v{XD+k}")
        A(f"v_and_b32 v{XU+2*k+1}, s58, v{XD+k}")
    A("s_branch KC_xud")
    A.label("KC_xum")
    for q in range(2):
        A(f"v_lshlrev_b32 v{XU+8*q}, 16, v{XS+q}")
        for k in range(1, 8):
            el = 8 - k
            r = XD + 4*q + (el >> 1)
            if el & 1: A(f"v_and_b32 v{XU+8*q+k}, s58, v{r}")
            else: A(f"v_lshlrev_b32 v{XU+8*q+k}, 16, v{r}")
    A.label("KC_xud")
    A("s_lshl_b32 s46, s21, 3")
    A("s_add_u32 s46, s46, s20")
    A("s_lshl_b32 s47, s46, 10")
    A("s_and_b32 s44, s3, 3")
    A("s_lshl_b32 s39, s44, 8")
    A("s_add_u32 s47, s47, s39")
    A(f"s_add_u32 s47, s47, {STS_OFF}")
    A("s_lshl_b32 s46, s46, 7")
    A("s_lshl_b32 s44, s44, 2")
    A("s_add_u32 s46, s46, s44")
    A(f"s_add_u32 s46, s46, {FLAG_OFF}")
    A("v_lshlrev_b32 v12, 3, v3")
    A("v_lshl_add_u32 v12, v4, 2, v12")
    A("v_mov_b32 v8, 0\nv_mov_b32 v9, 1\nv_mov_b32 v10, 0\nv_mov_b32 v11, 0")
    A("s_cmp_eq_u32 s3, 7")
    A("s_cbranch_scc1 KC_nohg")
    A.label("KC_nohg")
    stamp(A, 18)
    A("s_barrier")
    stamp(A, 3)
    ZF = [32, 36, 40, 44, 48, 52, 120, 124]; C = 88
    for k in range(4): A(f"ds_read_b128 {v(ZF[k],4)}, v6 offset:{1024*k}")
    for k in range(4): A(f"ds_read_b128 {v(ZF[4+k],4)}, v1 offset:{4096+1024*k}")
    for k in range(4):
        A(f"s_waitcnt lgkmcnt({7-k})")
        A(f"v_mfma_f32_32x32x16_f16 {v(C,16)}, {v(ZF[k],4)}, {v(M+4*k,4)}, {'0' if k==0 else v(C,16)}")
    A("s_waitcnt lgkmcnt(0)")
    A("s_cmp_eq_u32 s20, 0")
    A("s_cbranch_scc0 KC_nz")
    A("s_mov_b32 exec_lo, 1")
    A("s_mov_b32 exec_hi, 1")
    for k in range(4, 8):
        for z in range(4): A(f"v_mov_b32 v{ZF[k]+z}, 0")
    A("s_mov_b64 exec, -1")
    A("s_nop 1")
    A.label("KC_nz")
    for k in range(4, 8):
        A(f"v_mfma_f32_32x32x16_f16 {v(C,16)}, {v(ZF[k],4)}, {v(M+4*k,4)}, {v(C,16)}")
    SBR = 56; CBR = 72
    A("s_lshl_b32 s39, s20, 8")
    A("s_lshl_b32 s44, s37, 7")
    A("s_add_u32 s44, s39, s44")
    A(f"s_add_u32 s44, s44, {MOD_OFF + 3*2048}")
    A("v_lshlrev_b32 v1, 5, v4")
    for base, off in ((SBR, 0), (CBR, 2048)):
        for q in range(2):
            for z in range(2):
                A(f"buffer_load_dwordx4 {v(base+8*q+4*z,4)}, v1, s[8:11], s44 offen offset:{off+64*q+16*z}")
    A("s_or_b32 s39, s21, s36")
    A("s_cmp_eq_u32 s39, 0")
    A("s_cbranch_scc0 KC_nosh")
    A("s_lshl_b32 s39, s37, 7")
    A(f"s_add_u32 s39, s39, {SHL}")
    A("v_lshl_add_u32 v6, v4, 5, s39")
    for q in range(2):
        for z in range(2):
            A(f"ds_read_b128 {v(32+8*q+4*z,4)}, v6 offset:{64*q+16*z}")
    A("s_waitcnt lgkmcnt(0)")
    A("s_mov_b32 exec_lo, 1")
    A("s_mov_b32 exec_hi, 1")
    for k in range(16):
        A(f"v_fmamk_f32 v{C+k}, v{32+k}, {fl(8.0)}, v{C+k}")
    A("s_mov_b64 exec, -1")
    A.label("KC_nosh")
    for k in range(16):
        A(f"v_fmac_f32 v{XU+k}, v{GA+k}, v{C+k}")
    for k in range(8):
        A(f"v_cvt_pk_bf16_f32 v{32+k}, v{XU+2*k}, v{XU+2*k+1}")
    for k in range(8):
        A(f"v_dot2c_f32_bf16 v10, s59, v{32+k}")
        A(f"v_dot2c_f32_bf16 v11, v{32+k}, v{32+k}")
    A("v_permlane32_swap_b32 v10, v11")
    A("v_add_f32 v10, v10, v11")
    A("v_min_u32 v10, -2, v10")
    A("buffer_store_dword v10, v12, s[8:11], s47 offen sc1")
    A("buffer_store_dwordx4 v[32:35], v13, s[16:19], s45 offen sc1")
    A("buffer_store_dwordx4 v[36:39], v13, s[16:19], s45 offen offset:2048 sc1")
    stamp(A, 4)
    for k in range(8):
        A(f"v_lshlrev_b32 v{XU+2*k}, 16, v{32+k}")
        A(f"v_and_b32 v{XU+2*k+1}, s58, v{32+k}")
    A("v_lshlrev_b32 v6, 3, v3")
    A("v_lshl_add_u32 v6, v4, 9, v6")
    A("s_lshl_b32 s39, s21, 13")
    A("s_lshl_b32 s44, s36, 8")
    A("s_add_u32 s39, s39, s44")
    A(f"s_add_u32 s39, s39, {STS_OFF}")
    A("s_add_u32 s44, s39, 4096")
    A(f"s_mov_b32 s47, {SPIN}")
    SG = 88
    if SDL: A(f"s_waitcnt vmcnt(2)")
    A.label("KC_sg")
    for j in range(8):
        A(f"buffer_load_dwordx2 {v(SG+2*j,2)}, v6, s[8:11], {'s39' if j < 4 else 's44'} offen offset:{(j&3)*1024} sc1")
    A("s_waitcnt vmcnt(0)")
    for j in range(5): A(f"v_max3_u32 v{104+j}, v{SG+3*j}, v{SG+3*j+1}, v{SG+3*j+2}")
    A(f"v_max3_u32 v104, v104, v105, v{SG+15}")
    A("v_max3_u32 v106, v106, v107, v108")
    A("v_max_u32 v104, v104, v106")
    A("v_cmp_eq_u32 vcc, -1, v104")
    A("s_cbranch_vccz KC_sgd")
    A("s_sub_u32 s47, s47, 1")
    A("s_cbranch_scc0 KC_sg")
    A.label("KC_sgd")
    stamp(A, 8)
    for st in (4, 2, 1):
        for w in range(st): A(f"v_pk_add_f32 {v(SG+2*w,2)}, {v(SG+2*w,2)}, {v(SG+2*(w+st),2)}")
    A(f"v_mov_b32 v{SG+2}, v{SG}")
    A(f"v_mov_b32 v{SG+3}, v{SG+1}")
    A(f"v_permlane32_swap_b32 v{SG}, v{SG+2}")
    A(f"v_permlane32_swap_b32 v{SG+1}, v{SG+3}")
    A(f"v_pk_add_f32 {v(SG,2)}, {v(SG,2)}, {v(SG+2,2)}")
    A(f"v_mul_f32 v{SG}, {fl(1/512)}, v{SG}")
    A(f"v_mul_f32 v{SG+1}, {fl(1/512)}, v{SG+1}")
    A(f"v_fma_f32 v{SG+1}, -v{SG}, v{SG}, v{SG+1}")
    A(f"v_max_f32 v{SG+1}, 0, v{SG+1}")
    A(f"v_add_f32 v{SG+1}, {fl(1e-5)}, v{SG+1}")
    A(f"v_rsq_f32 v{SG+2}, v{SG+1}")
    A(f"v_mul_f32 v{SG+3}, -v{SG}, v{SG+2}")
    for k in range(8): A(f"v_pk_fma_f32 {v(XU+2*k,2)}, {v(XU+2*k,2)}, {v(SG+2,2)}, {v(SG+2,2)} op_sel:[0,0,1] op_sel_hi:[1,0,1]")
    for k in range(8): A(f"v_pk_fma_f32 {v(XU+2*k,2)}, {v(XU+2*k,2)}, {v(CBR+2*k,2)}, {v(SBR+2*k,2)}")
    for k in range(8): A(f"v_cvt_pk_bf16_f32 v{40+k}, v{XU+2*k}, v{XU+2*k+1}")
    A(f"s_add_u32 s45, s45, {H2_REL}")
    A("buffer_store_dwordx4 v[40:43], v13, s[16:19], s45 offen sc1")
    A("buffer_store_dwordx4 v[44:47], v13, s[16:19], s45 offen offset:2048 sc1")
    A("s_mov_b64 exec, 1")
    A("s_waitcnt vmcnt(0)")
    A("buffer_store_dword v9, v8, s[8:11], s46 offen sc1")
    A("s_mov_b64 exec, -1")
    stamp(A, 5)
    A("s_cmp_eq_u32 s3, 7")
    A("s_cbranch_scc1 KC_w7a")
    A(f"v_mov_b32 v10, {GOL}")
    ldswait("w2", 20, 1)
    for i in range(HW1): wload(i)
    A("s_branch KC_ffn")
    A.label("KC_w7a")
    A.label("KC_ffn")
    srd(A, 48, 4, ACT_BYTES, ACT_OFF)
    A("s_lshl_b32 s24, s61, 16")
    A("s_lshl_b32 s25, s67, 13")
    A("s_add_u32 s24, s24, s25")
    A(f"s_add_u32 s24, s24, {H2_REL}")
    A("s_xor_b32 s25, s24, 0x10000")
    A("s_sub_u32 s27, s67, s66")
    A("s_and_b32 s27, s27, 7")
    A("s_lshl_b32 s27, s27, 13")
    A("s_lshl_b32 s52, s21, 3")
    A("s_add_u32 s52, s52, s70")
    A("s_mul_i32 s53, s52, 28672")
    A("s_lshl_b32 s52, s52, 7")
    A("s_and_b32 s22, s21, 1")
    A("s_lshl_b32 s22, s22, 5")
    A("s_add_u32 s52, s52, s22")
    A(f"s_add_u32 s52, s52, {F2_REL}")
    A("s_xor_b32 s23, s52, 32")
    A(f"s_add_u32 s56, s4, {FLAG_OFF}")
    A("s_addc_u32 s57, s5, 0")
    side_addr()
    A("s_cmp_lt_u32 s3, 4")
    A("s_cbranch_scc0 KC_nowd")
    for lam in range(8, 8 + LWE): dload(lam)
    A.label("KC_nowd")
    stamp(A, 6)
    A("s_lshl_b32 s44, s61, 3")
    A("s_add_u32 s44, s44, s67")
    A("s_lshl_b32 s44, s44, 7")
    A("s_xor_b32 s45, s44, 0x400")
    def poll1(tag, so):
        A(f"s_mov_b32 s47, {SPIN}")
        A.label(f"KC_poll{tag}")
        A(f"s_load_dwordx4 s[36:39], s[56:57], {so} glc")
        A("s_waitcnt lgkmcnt(0)")
        A("s_and_b64 s[36:37], s[36:37], s[38:39]")
        A("s_and_b32 s36, s36, s37")
        A("s_cmp_eq_u32 s36, 1")
        A(f"s_cbranch_scc1 KC_got{tag}")
        A("s_sub_u32 s47, s47, 1")
        A(f"s_cbranch_scc0 KC_poll{tag}")
        A.label(f"KC_got{tag}")
    def h2dma(so, ldsoff):
        for half in range(2):
            A(f"s_add_u32 m0, s27, {ldsoff + half*4096}")
            if half: A(f"s_add_u32 {so}, {so}, 4096")
            for i in range(4): A(f"buffer_load_dwordx4 v5, s[16:19], {so} offen offset:{i*1024} sc1 lds")
    poll1("a", "s44")
    stamp(A, 7)
    h2dma("s24", 0)
    A.label("KC_n1d")
    A("v_lshlrev_b32 v7, 10, v4")
    A("v_lshl_add_u32 v7, v3, 4, v7")
    A("v_mov_b32 v8, 0")
    A("v_mov_b32 v9, 1")
    A(f"v_mov_b32 v10, {GOL}")
    c0 = -2.0 * math.sqrt(2.0 / math.pi) * math.log2(math.e)
    A(f"s_mov_b32 s32, {fl(c0 * 0.044715)}")
    A(f"v_mov_b32 v11, {fl(c0)}")
    A("s_lshl_b32 s46, s61, 3")
    A("s_lshr_b32 s47, s60, 1")
    A("s_add_u32 s46, s46, s47")
    A("s_xor_b32 s47, s46, 8")
    A("s_mul_i32 s29, s46, 28672")
    A("s_mul_i32 s31, s47, 28672")
    A("s_lshl_b32 s30, s3, 1")
    A("s_and_b32 s28, s60, 1")
    A("s_add_u32 s30, s30, s28")
    A("s_lshl_b32 s30, s30, 11")
    A("s_add_u32 s29, s29, s30")
    A("s_add_u32 s31, s31, s30")
    A("s_lshl_b32 s28, s28, 3")
    A("s_add_u32 s28, s28, s3")
    A("s_lshl_b32 s28, s28, 2")
    A("s_lshl_b32 s33, s46, 7")
    A("s_add_u32 s33, s33, s28")
    A(f"s_add_u32 s33, s33, {FLAG_OFF + F2_REL}")
    A("s_xor_b32 s34, s33, 0x400")
    poll1("b", "s45")
    if H2B:
        h2dma("s25", 65536)
        A("s_waitcnt vmcnt(8) lgkmcnt(0)")
        A("s_barrier")
    else:
        A("s_waitcnt vmcnt(0) lgkmcnt(0)")
        A("s_barrier")
        h2dma("s25", 65536)
    stamp(A, 9)
    def signal(off):
        A("s_mov_b64 exec, 1")
        A("s_waitcnt lgkmcnt(0)")
        A(f"ds_add_u32 v10, v9 offset:{off}")
        A("s_mov_b64 exec, -1")
    def flag(so):
        A("s_mov_b64 exec, 1")
        A("s_waitcnt vmcnt(0)")
        A(f"buffer_store_dword v9, v8, s[8:11], {so} offen sc1")
        A("s_mov_b64 exec, -1")
    def sreq(side): A(f"s_load_dwordx8 s[36:43], s[56:57], {'s52' if side == 0 else 's23'} glc")
    def stest(lo, hi):
        A(f"s_and_b32 s28, s{36+lo}, s{37+lo}")
        for k in range(lo + 2, hi): A(f"s_and_b32 s28, s28, s{36+k}")
        A("s_cmp_eq_u32 s28, 1")
    def spoll(tag, side, lo, hi):
        A(f"s_mov_b32 s47, {SPIN}")
        A.label(f"KC_pl{tag}")
        sreq(side)
        A("s_waitcnt lgkmcnt(0)")
        stest(lo, hi)
        A(f"s_cbranch_scc1 KC_gt{tag}")
        if SL2: A(f"s_sleep {SL2}")
        A("s_sub_u32 s47, s47, 1")
        A(f"s_cbranch_scc0 KC_pl{tag}")
        A.label(f"KC_gt{tag}")
    C = 16; GT = 48
    def park():
        ldswait(f"a{len(A.items)}", 4, 7)
        A("s_and_b32 s55, s3, 3")
        A("s_lshl_b32 s55, s55, 14")
        A("s_xor_b32 s26, s70, 4")
        A("s_sub_u32 s26, s26, s70")
        A(f"s_mul_i32 s26, s26, {WQC}")
        A("s_add_u32 s26, s26, s65")
        for lam in range(8): dload(lam, lam * 2048, "s26")
    AR = [192 + 4*k for k in range(16)]
    def aload(lam, slot):
        ft = lam % 7; vo = "v14" if lam < 7 else "v15"
        A(f"s_add_u32 s30, s53, {ft*4096}")
        for nt in range(2):
            A(f"buffer_load_dwordx4 {v(AR[slot+nt],4)}, {vo}, s[48:51], s30 offen offset:{nt*1024} sc1")
    A("s_cmp_lt_u32 s3, 4")
    A("s_cbranch_scc1 KC_p1")
    A("s_cmp_eq_u32 s3, 7")
    A("s_cbranch_scc1 KC_nohw")
    for i in range(HW1, 32): wload(i)
    A.label("KC_nohw")
    for lam in range(8, 14): dload(lam)
    A("s_waitcnt vmcnt(12)")
    signal(0)
    A("s_cmp_eq_u32 s3, 7")
    A("s_cbranch_scc1 KC_w7b")
    A("s_mov_b32 s52, s23")
    A.label("KC_p1")
    A("s_setprio 2")
    A("s_mov_b32 s35, 0")
    A.label("KC_pass")
    BR = [48, 56, 80, 88]
    def brd(ks):
        A(f"ds_read_b128 {v(BR[ks&3],4)}, v7 offset:{ks*2048}")
        A(f"ds_read_b128 {v(BR[ks&3]+4,4)}, v7 offset:{ks*2048+512}")
    for ks in range(3): brd(ks)
    for ks in range(32):
        if ks + 3 < 32: brd(ks + 3)
        if ks < 28: A(f"s_waitcnt lgkmcnt({2*min(3, 31-ks)})")
        elif ks == 28:
            A("s_waitcnt lgkmcnt(0)")
            A("s_cmp_eq_u32 s35, 0")
            A("s_cbranch_scc1 KC_nosr")
            sreq(0)
            A.label("KC_nosr")
        for nt in ((0, 1) if ks & 1 == 0 else (1, 0)):
            c = C + 16*nt
            A(f"v_mfma_f32_32x32x16_bf16 {v(c,16)}, {v(W+4*ks,4)}, {v(BR[ks&3]+4*nt,4)}, {'0' if ks==0 else v(c,16)}")
    A("s_setprio 1")
    A("s_cmp_eq_u32 s35, 0")
    A("s_cbranch_scc0 KC_pe2")
    stamp(A, 10)
    signal(4)
    A("s_branch KC_gelu")
    A.label("KC_pe2")
    stamp(A, 13)
    signal(8)
    A("s_mov_b32 s29, s31")
    A("s_mov_b32 s33, s34")
    A("s_mov_b32 s54, 0")
    A("s_cmp_lt_u32 s3, 4")
    A("s_cbranch_scc1 KC_gelu")
    dload(7)
    stest(0, 4)
    A("s_cbranch_scc0 KC_gelu")
    A("s_mov_b32 s54, 1")
    for lam in range(7, 11): aload(lam, 2*(lam - 7))
    A.label("KC_gelu")
    A("s_nop 3")
    for nt in (1, 0):
        g0 = C + 16*nt; u0 = g0 + 8; t0 = GT
        for k in range(8): A(f"v_mul_f32 v{t0+k}, v{g0+k}, v{g0+k}")
        for k in range(8): A(f"v_fma_f32 v{t0+k}, v{t0+k}, s32, v11")
        for k in range(8): A(f"v_mul_f32 v{t0+k}, v{t0+k}, v{g0+k}")
        for k in range(8): A(f"v_exp_f32 v{t0+k}, v{t0+k}")
        for k in range(8): A(f"v_mul_f32 v{u0+k}, v{u0+k}, v{g0+k}")
        for k in range(8): A(f"v_add_f32 v{t0+k}, 1.0, v{t0+k}")
        for k in range(8): A(f"v_rcp_f32 v{t0+k}, v{t0+k}")
        for k in range(8): A(f"v_mul_f32 v{u0+k}, v{u0+k}, v{t0+k}")
        for k in range(4): A(f"v_cvt_pk_bf16_f32 v{g0+k}, v{u0+2*k}, v{u0+2*k+1}")
        A(f"buffer_store_dwordx4 {v(g0,4)}, v5, s[48:51], s29 offen offset:{nt*1024} sc1")
    A("s_cmp_eq_u32 s35, 0")
    A("s_cbranch_scc0 KC_after2")
    stamp(A, 11)
    A("s_mov_b32 s35, 1")
    A("v_add_u32 v7, 0x10000, v7")
    A("s_cmp_lt_u32 s3, 4")
    A("s_cbranch_scc0 KC_mid_hi")
    flag("s33")
    signal(0)
    for lam in range(8 + LWE, 14): dload(lam)
    A("s_branch KC_mid_done")
    A.label("KC_mid_hi")
    flag("s33")
    park()
    A("s_waitcnt vmcnt(0)")
    signal(12)
    A.label("KC_mid_done")
    ldswait("b", 0, 8)
    stamp(A, 12)
    A("s_branch KC_pass")
    C = 128
    def mmq(d0, d1, a0, a1, first=False):
        for t, nt in ((0,0),(0,1),(1,1),(1,0)):
            c = C + 32*t + 16*nt
            A(f"v_mfma_f32_32x32x16_bf16 {v(c,16)}, {v((d0,d1)[t],4)}, {v((a0,a1)[nt],4)}, {'0' if first else v(c,16)}")
    def mm1(lam, slot, first=False): mmq(DR(lam,0), DR(lam,1), AR[slot], AR[slot+1], first)
    def mm(lams, slot0, n_young):
        for ik, lam in enumerate(lams):
            A(f"s_waitcnt vmcnt({2*len(lams) - 2*ik - 2 + n_young})")
            mm1(lam, slot0 + 2*ik)
    A.label("KC_after2")
    stamp(A, 14)
    A("s_cmp_lt_u32 s3, 4")
    A("s_cbranch_scc1 KC_lo2")
    for k in range(64): A(f"v_mov_b32 v{C+k}, 0")
    flag("s33")
    A("s_setprio 0")
    A("s_cmp_eq_u32 s54, 1")
    A("s_cbranch_scc1 KC_b2")
    A("s_branch KC_slow3")
    A.label("KC_w7b")
    A(f"s_setprio {E('W7P', 3)}")
    dload(7)
    items = [(k, lam) for k in range(4) for lam in range(4)] + [(k, lam) for k in range(4) for lam in range(4, 7)]
    RQ = [16 + 4*q for q in range(12)] + [192 + 4*q for q in range(16)]
    NS = 7
    SQ = lambda i, q: RQ[4*(i % NS) + q]
    DLT = [44, 45, 46, 54]
    for k in range(4):
        A(f"s_add_u32 s{DLT[k]}, s70, {5 + k}")
        A(f"s_and_b32 s{DLT[k]}, s{DLT[k]}, 7")
        A(f"s_sub_u32 s{DLT[k]}, s{DLT[k]}, s70")
    def iw(i):
        k, lam = items[i]
        A(f"s_mul_i32 s71, s{DLT[k]}, {WQC}")
        A("s_add_u32 s71, s71, s65")
        A(f"s_add_u32 s71, s71, {lam*4096}")
        for t in range(2): A(f"buffer_load_dwordx4 {v(SQ(i,t),4)}, v14, s[12:15], s71 offen offset:{t*1024}")
    def ia(i):
        k, lam = items[i]
        A(f"s_mul_i32 s33, s{DLT[k]}, 28672")
        A("s_add_u32 s33, s33, s53")
        A(f"s_add_u32 s33, s33, {lam*4096}")
        for nt in range(2): A(f"buffer_load_dwordx4 {v(SQ(i,2+nt),4)}, v14, s[48:51], s33 offen offset:{nt*1024} sc1")
    def poll4(tag, off, n):
        PR = [36, 40, 24, 28]
        A(f"s_mov_b32 s47, {SPIN}")
        A.label(f"KC_q{tag}")
        for k in range(4):
            A(f"s_lshl_b32 s34, s{DLT[k]}, 7")
            A("s_add_u32 s34, s34, s52")
            A(f"s_add_u32 s34, s34, {off}")
            A(f"s_load_dwordx4 s[{PR[k]}:{PR[k]+3}], s[56:57], s34 glc")
        A("s_waitcnt lgkmcnt(0)")
        for k in range(1, 4):
            A(f"s_and_b64 s[36:37], s[36:37], s[{PR[k]}:{PR[k]+1}]")
            A(f"s_and_b64 s[38:39], s[38:39], s[{PR[k]+2}:{PR[k]+3}]")
        A("s_and_b32 s36, s36, s37")
        A("s_and_b32 s36, s36, s38")
        if n == 4: A("s_and_b32 s36, s36, s39")
        A("s_cmp_eq_u32 s36, 1")
        A(f"s_cbranch_scc1 KC_r{tag}")
        if SL2: A(f"s_sleep {SL2}")
        A("s_sub_u32 s47, s47, 1")
        A(f"s_cbranch_scc0 KC_q{tag}")
        A.label(f"KC_r{tag}")
    order = []
    for i in range(NS): iw(i); order += [("w", i)] * 2
    poll4("0", 0, 4)
    for i in range(NS): ia(i); order += [("a", i)] * 2
    park(); order += [("p", 0)] * 16
    for i in range(28):
        last = max(j for j, o in enumerate(order) if o == ("a", i))
        A(f"s_waitcnt vmcnt({len(order) - 1 - last})")
        if i == NS: signal(12)
        mmq(SQ(i,0), SQ(i,1), SQ(i,2), SQ(i,3), i == 0)
        if i + NS < 28:
            iw(i + NS); order += [("w", i + NS)] * 2
            if i + NS == 16: poll4("1", 16, 3)
            ia(i + NS); order += [("a", i + NS)] * 2
    stamp(A, 15)
    A("s_branch KC_slow3")
    A.label("KC_lo2")
    stest(0, 7)
    A("s_cbranch_scc1 KC_gtg")
    flag("s33")
    spoll("g0", 0, 0, 7)
    for lam in range(7): aload(lam, 2*lam)
    A("s_branch KC_lo3")
    A.label("KC_gtg")
    for lam in range(7): aload(lam, 2*lam)
    A("s_mov_b64 exec, 1")
    A("s_waitcnt vmcnt(14)")
    A("buffer_store_dword v9, v8, s[8:11], s33 offen sc1")
    A("s_mov_b64 exec, -1")
    A.label("KC_lo3")
    A("s_setprio 0")
    if LDL:
        for lam in range(8, 14): dload(lam)
    ldswait("k", 12, 4)
    A("s_lshl_b32 s55, s3, 14")
    A("v_add_u32 v13, s55, v5")
    for lam in range(8):
        for t in range(2): A(f"ds_read_b128 {v(DR(lam,t),4)}, v13 offset:{lam*2048 + t*1024}")
    A(f"s_waitcnt vmcnt({18 if LDL else 6}) lgkmcnt(0)")
    stamp(A, 15)
    sreq(1)
    for lam in range(4): mm1(lam, 2*lam, lam == 0)
    A("s_waitcnt lgkmcnt(0)")
    stest(0, 4)
    A("s_cbranch_scc0 KC_slow2")
    for lam in range(7, 11): aload(lam, 2*(lam - 7))
    A("s_waitcnt vmcnt(8)")
    for lam in range(4, 7): mm1(lam, 2*lam)
    A("s_branch KC_b2")
    A.label("KC_slow2")
    A("s_waitcnt vmcnt(0)")
    for lam in range(4, 7): mm1(lam, 2*lam)
    A.label("KC_slow3")
    spoll("h", 1, 0, 4)
    for lam in range(7, 11): aload(lam, 2*(lam - 7))
    A.label("KC_b2")
    sreq(1)
    A("v_and_b32 v9, 7, v0")
    A("v_lshrrev_b32 v1, 3, v0")
    A("s_lshl_b32 s31, s20, 3")
    A("v_add_u32 v11, s31, v9")
    A("v_lshlrev_b32 v12, 5, v11")
    A(f"s_mov_b32 s32, {MOD_OFF + 5*2048}")
    A("buffer_load_dwordx4 v[24:27], v12, s[8:11], s32 offen")
    A("buffer_load_dwordx4 v[28:31], v12, s[8:11], s32 offen offset:16")
    A("v_sub_u32 v32, 63, v11")
    A("s_cmp_lt_u32 s20, 4")
    A("s_cselect_b64 vcc, -1, 0")
    A("s_cselect_b32 s33, 0, 4")
    A("s_mov_b32 s34, 0x01000c0c")
    A("s_cselect_b32 s34, 0x05040c0c, s34")
    A("s_add_u32 s35, s34, 0x02020000")
    A("v_cndmask_b32 v32, v32, v11, vcc")
    A("v_lshrrev_b32 v33, 2, v32")
    A("v_and_b32 v32, 3, v32")
    A("v_lshl_add_u32 v32, v33, 3, v32")
    A("v_add_u32 v32, s33, v32")
    A("v_lshlrev_b32 v32, 10, v32")
    A("v_lshl_add_u32 v32, v1, 4, v32")
    A("v_sub_u32 v33, 64, v11")
    A("v_and_b32 v33, 31, v33")
    A("v_lshrrev_b32 v34, 2, v33")
    A("v_and_b32 v33, 3, v33")
    A("v_lshl_add_u32 v33, v34, 3, v33")
    A("v_add_u32 v33, 4, v33")
    A("v_lshlrev_b32 v33, 10, v33")
    A("v_lshl_add_u32 v33, v1, 4, v33")
    A("s_lshl_b32 s31, s21, 16")
    A("buffer_load_dwordx4 v[16:19], v32, s[16:19], s31 offen sc1")
    A("buffer_load_ushort v20, v33, s[16:19], s31 offen sc1")
    A("v_and_b32 v32, 31, v1")
    A("v_lshlrev_b32 v32, 6, v32")
    A("v_add_u32 v32, s21, v32")
    A("v_add_u32 v33, 32, v32")
    A("v_sub_u32 v34, 0x800, v32")
    A("s_cmp_eq_u32 s21, 0")
    A("s_cselect_b64 vcc, -1, 0")
    A("v_cndmask_b32 v33, v34, v33, vcc")
    A("s_cmp_lt_u32 s3, 4")
    A("s_cselect_b64 vcc, -1, 0")
    A("v_cndmask_b32 v32, v33, v32, vcc")
    A("v_lshlrev_b32 v32, 10, v32")
    A("v_lshl_add_u32 v11, v11, 4, v32")
    srd(A, 44, 68, 0x200000) if False else None
    A(f"v_mul_u32_u24 v21, {4*RCH}, v4")
    A("v_lshl_add_u32 v21, v3, 4, v21")
    A(f"s_mul_i32 s31, s3, {RSRC}")
    A(f"s_add_u32 s31, s31, {REDL}")
    A("v_add_u32 v21, s31, v21")
    A(f"v_mul_u32_u24 v22, {RCH}, v9")
    A("v_lshl_add_u32 v22, v1, 4, v22")
    A(f"v_add_u32 v22, {REDL}, v22")
    A("s_waitcnt lgkmcnt(0)")
    stest(4, 7)
    A("s_cbranch_scc0 KC_slow4")
    for lam in range(11, 14): aload(lam, 8 + 2*(lam - 11))
    mm(list(range(7, 11)), 0, 10)
    A("s_branch KC_b3")
    A.label("KC_slow4")
    mm(list(range(7, 11)), 0, 4)
    spoll("3", 1, 4, 7)
    for lam in range(11, 14): aload(lam, 8 + 2*(lam - 11))
    A.label("KC_b3")
    XO = 32
    A("s_waitcnt vmcnt(6)")
    for k in range(8):
        mir = "v20" if k == 0 else f"v{16 + ((8-k) >> 1)}"
        A(f"v_perm_b32 v{XO+k}, v{16 + (k >> 1)}, {mir}, {'s34' if k % 2 == 0 else 's35'}")
    srd(A, 60, 68, 0x200000)
    ldswait("d", 8, 7)
    mm(list(range(11, 14)), 8, 0)
    PK = 192
    for nt in (1, 0):
        for jj in range(4):
            p = PK + 16*nt + 4*jj
            for t in range(2):
                c = C + 32*t + 16*nt
                A(f"v_cvt_pk_bf16_f32 v{p+2*t}, v{c+jj}, v{c+4+jj}")
                A(f"v_cvt_pk_bf16_f32 v{p+2*t+1}, v{c+8+jj}, v{c+12+jj}")
            A(f"ds_write_b128 v21, {v(p,4)} offset:{jj*RCH + nt*512}")
    A("s_waitcnt lgkmcnt(0)")
    A("s_barrier")
    stamp(A, 20)
    D = 96; AC = 64
    for i in range(8): A(f"ds_read_b128 {v(D+4*i,4)}, v22 offset:{i*RSRC}")
    for i in range(8):
        A(f"s_waitcnt lgkmcnt({7-i})")
        tb = AC if i == 0 else 72
        for j in range(4):
            A(f"v_lshlrev_b32 v{tb+2*j}, 16, v{D+4*i+j}")
            A(f"v_and_b32 v{tb+2*j+1}, s58, v{D+4*i+j}")
        if i:
            for j in range(4): A(f"v_pk_add_f32 {v(AC+2*j,2)}, {v(AC+2*j,2)}, {v(tb+2*j,2)}")
    for k in range(8): A(f"v_fmac_f32 v{XO+k}, v{24+k}, v{AC+k}")
    for k in range(4): A(f"v_cvt_pk_bf16_f32 v{48+k}, v{XO+2*k}, v{XO+2*k+1}")
    A("buffer_store_dwordx4 v[48:51], v11, s[60:63], 0 offen")
    if STAMPS: A("s_waitcnt vmcnt(0)")
    stamp_flush(A, 0, 22)
    A.label("KC_end")
    A("s_endpgm")
    A.label("KC_code_end")
    return A
```

```python
from gen_common import *
K1_SLAB, K1_GEMV, K1_REL = 64, 96, 96
K1_GRID = K1_SLAB + K1_GEMV + K1_REL
RS = 576
NPF = 0
PST = int(os.environ.get("P0ST", "0"))
N1, N2 = 41 + 64 + 96, 80 + 96
def prefill(A):
    srd(A, 52, 4, LOW_BYTES)
    A("v_and_b32 v1, 63, v0")
    A("v_lshlrev_b32 v1, 4, v1")
    A("s_lshl_b32 s21, s36, 13")
    A(f"s_add_u32 s22, s21, {STS_OFF}")
    A(f"s_add_u32 s23, s21, {FLAG_OFF - 32*8192}")
    A("s_cmp_lt_u32 s36, 32")
    A("s_cselect_b32 s22, s22, s23")
    A("s_cselect_b32 s24, -1, 0")
    A("s_add_u32 s23, s22, 4096")
    for k in range(4): A(f"v_mov_b32 v{8+k}, s24")
    for z in range(8): A(f"buffer_store_dwordx4 v[8:11], v1, s[52:55], {'s22' if z < 4 else 's23'} offen offset:{(z&3)*1024} sc1")
    A("s_waitcnt vmcnt(0)")
def arrive(A, off, tag):
    A("s_mov_b32 s58, 1")
    A("s_atomic_add s58, s[66:67], 0 glc")
    A("s_waitcnt lgkmcnt(0)")
    A(f"s_cmp_eq_u32 s58, {N1 - 1}")
    A(f"s_cbranch_scc0 K1_na{tag}")
    A("s_mov_b32 s58, 1")
    A("s_atomic_add s58, s[66:67], 128")
    A.label(f"K1_na{tag}")
def early(A, tag):
    pass
def phase0(A):
    code_prefetch = None
    A("s_load_dwordx2 s[4:5], s[0:1], 104")
    A("s_load_dwordx2 s[66:67], s[0:1], 96")
    if int(os.environ.get("CPF", "1")):
        A("s_getpc_b64 s[26:27]")
        A.label("K1_pc")
        A("v_lshlrev_b32 v1, 6, v0")
        A(f"s_cmp_lt_u32 s2, {int(os.environ.get('CPFN', '32'))}")
        A("s_cbranch_scc0 K1_pfskip")
        A("v_cmp_gt_u32 vcc, KC_code_end-K1_pc-4, v1")
        A("s_and_saveexec_b64 s[28:29], vcc")
        A("s_cbranch_execz K1_pfr")
        A("global_load_dword v127, v1, s[26:27]")
        A.label("K1_pfr")
        A("s_mov_b64 exec, -1")
        A.label("K1_pfskip")
    A("v_lshrrev_b32 v1, 6, v0")
    A("v_readfirstlane_b32 s65, v1")
    def tk(tag):
        A("s_cmp_eq_u32 s65, 7")
        A(f"s_cbranch_scc0 K1_notk{tag}")
        A("s_getreg_b32 s71, hwreg(HW_REG_XCC_ID)")
        A("s_and_b32 s71, s71, 7")
        A("s_lshl_b32 s69, s71, 2")
        A("s_add_u32 s69, s69, 32")
        A("s_mov_b32 s70, 1")
        A("s_atomic_add s70, s[66:67], s69 glc")
        A.label(f"K1_notk{tag}")
    A(f"s_cmp_ge_u32 s2, {K1_SLAB + K1_GEMV}")
    A("s_cbranch_scc1 K1_rel")
    A(f"s_cmp_ge_u32 s2, {K1_SLAB}")
    A("s_cbranch_scc1 K1_gemv")
    A("s_load_dwordx2 s[6:7], s[0:1], 0")
    A("s_and_b32 s16, s2, 31")
    A("s_lshr_b32 s17, s2, 5")
    A("s_lshl_b32 s18, s17, 9")
    A("s_xor_b32 s20, s18, 512")
    A("s_lshl_b32 s21, s17, 5")
    A("v_lshrrev_b32 v1, 3, v0")
    A("v_xor_b32 v1, s21, v1")
    A("v_and_b32 v2, 7, v0")
    A("v_lshlrev_b32 v2, 4, v2")
    A("v_lshl_add_u32 v3, v1, 15, v2")
    A("s_lshl_b32 s19, s16, 10")
    A("v_add_u32 v3, s19, v3")
    A("s_waitcnt lgkmcnt(0)")
    srd(A, 8, 6, 0x200000)
    D = 32
    for i in range(8):
        A(f"buffer_load_dwordx4 {v(D+4*i,4)}, v3, s[8:11], {'s18' if i < 4 else 's20'} offen offset:{(i&3)*128}")
    if PST: stamp(A, 9)
    tk("s")
    srd(A, 12, 4, 0x200000, SLAB_OFF)
    A(f"v_mul_u32_u24 v4, {RS}, v1")
    A("v_add_u32 v4, v4, v2")
    A("v_and_b32 v5, 63, v0")
    A("v_lshrrev_b32 v6, 6, v0")
    A("v_and_b32 v7, 31, v5")
    A("v_lshrrev_b32 v8, 5, v5")
    A("v_and_b32 v9, 3, v6")
    A("v_lshrrev_b32 v10, 2, v6")
    A("v_cmp_eq_u32 vcc, 0, v7")
    A("v_cndmask_b32 v11, v7, 32, vcc")
    A(f"v_mov_b32 v12, {fl(0.25)}")
    A("v_cndmask_b32 v12, v12, 0, vcc")
    A("v_cmp_eq_u32 vcc, 0, v10")
    A("v_cndmask_b32 v11, v11, v7, vcc")
    A("v_cndmask_b32 v12, v12, 0, vcc")
    A("v_cvt_f32_u32 v11, v11")
    A(f"v_mul_f32 v11, {fl(1/64)}, v11")
    A("v_lshlrev_b32 v13, 3, v8")
    A("v_cvt_f32_u32 v13, v13")
    A("v_fma_f32 v12, v11, v13, v12")
    F = 64; T = 80
    for ks in range(4):
        for j in range(8): A(f"v_fmamk_f32 v{T+j}, v11, {fl(float(16*ks+j))}, v12")
        for j in range(8): A(f"v_cos_f32 v{T+j}, v{T+j}")
        for j in range(4): A(f"v_cvt_pk_f16_f32 v{F+4*ks+j}, v{T+2*j}, v{T+2*j+1}")
    A("v_and_b32 v14, 15, v5")
    A("v_lshrrev_b32 v15, 2, v14")
    A("v_lshl_add_u32 v15, v8, 3, v15")
    A(f"v_mul_u32_u24 v15, {RS}, v15")
    A("v_bfe_u32 v16, v5, 4, 1")
    A("v_lshlrev_b32 v16, 2, v16")
    A("v_and_b32 v17, 1, v14")
    A("v_lshl_or_b32 v16, v17, 1, v16")
    A("v_bfe_u32 v17, v14, 1, 1")
    A("v_or_b32 v16, v16, v17")
    A("v_lshlrev_b32 v16, 3, v16")
    A("v_lshl_add_u32 v16, v9, 7, v16")
    A("v_add_u32 v15, v15, v16")
    A("v_lshl_add_u32 v18, v7, 1, v10")
    A("v_lshlrev_b32 v18, 15, v18")
    A("v_lshl_add_u32 v18, v9, 7, v18")
    A("v_lshl_add_u32 v18, v8, 4, v18")
    A("s_add_u32 s18, s18, s19")
    A("v_mov_b32 v20, 0\nv_mov_b32 v21, 0\nv_mov_b32 v22, 0\nv_mov_b32 v23, 0")
    A("s_mov_b32 s30, 0x3f803f80")
    for i in range(8):
        A(f"s_waitcnt vmcnt({7-i+NPF})")
        for j in range(4):
            r = D + 4*i + j
            A(f"v_dot2c_f32_bf16 v{20+(j&1)}, s30, v{r}")
            A(f"v_dot2c_f32_bf16 v{22+(j&1)}, v{r}, v{r}")
    if PST: stamp(A, 10)
    A("v_add_f32 v20, v20, v21")
    A("v_add_f32 v22, v22, v23")
    for m in ("quad_perm:[1,0,3,2]", "quad_perm:[2,3,0,1]", "row_half_mirror"):
        A(f"v_add_f32_dpp v20, v20, v20 {m} row_mask:0xf bank_mask:0xf")
        A(f"v_add_f32_dpp v22, v22, v22 {m} row_mask:0xf bank_mask:0xf")
    A(f"v_mul_f32 v20, {fl(1/512)}, v20")
    A(f"v_mul_f32 v22, {fl(1/512)}, v22")
    A("v_fma_f32 v22, -v20, v20, v22")
    A("v_max_f32 v22, 0, v22")
    A(f"v_add_f32 v22, {fl(1e-5)}, v22")
    A("v_rsq_f32 v22, v22")
    A("v_mul_f32 v20, v20, v22")
    A("v_mov_b32 v23, v22")
    A("v_sub_f32 v20, 0, v20")
    A("v_mov_b32 v21, v20")
    A("s_mov_b32 s31, 0xffff0000")
    for i in range(4):
        for j in range(4):
            r = D + 4*i + j
            t = 24 + 2*(j & 1)
            A(f"v_lshlrev_b32 v{t}, 16, v{r}")
            A(f"v_and_b32 v{t+1}, s31, v{r}")
            A(f"v_pk_fma_f32 {v(t,2)}, {v(t,2)}, v[22:23], v[20:21]")
            A(f"v_cvt_pk_f16_f32 v{r}, v{t}, v{t+1}")
        A(f"ds_write_b128 v4, {v(D+4*i,4)} offset:{128*i}")
    A("s_waitcnt lgkmcnt(0)")
    A("s_barrier")
    if PST: stamp(A, 11)
    Af = 32
    for t in range(2):
        for ks in range(4):
            for q in range(2):
                A(f"ds_read_b64_tr_b16 {v(Af+16*t+4*ks+2*q,2)}, v15 offset:{(16*ks+4*q)*RS + 64*t}")
    C = 96
    for t in range(2):
        for ks in range(4):
            A(f"s_waitcnt lgkmcnt({14-8*t-2*ks})")
            A(f"v_mfma_f32_32x32x16_f16 {v(C+16*t,16)}, {v(Af+16*t+4*ks,4)}, {v(F+4*ks,4)}, {'0' if ks==0 else v(C+16*t,16)}")
    A("v_mul_u32_u24 v19, 144, v7")
    A("v_lshl_add_u32 v19, v8, 4, v19")
    A(f"v_mul_u32_u24 v20, {32*144}, v6")
    A(f"v_add_u32 v20, {64*RS}, v20")
    A("v_add_u32 v19, v19, v20")
    A("v_lshrrev_b32 v21, 3, v5")
    A("v_mul_u32_u24 v22, 144, v21")
    A("v_add3_u32 v22, v22, v20, v2")
    A("v_lshl_add_u32 v18, v21, 1, v10")
    A("v_lshlrev_b32 v18, 15, v18")
    A("v_lshl_add_u32 v18, v9, 7, v18")
    A("v_add_u32 v18, v18, v2")
    for t in range(2):
        for j in range(8):
            A(f"v_cvt_pk_f16_f32 v{80+8*t+j}, v{C+16*t+2*j}, v{C+16*t+2*j+1}")
        A(f"ds_write_b128 v19, {v(80+8*t,4)} offset:{64*t}")
        A(f"ds_write_b128 v19, {v(84+8*t,4)} offset:{64*t+32}")
    for i in range(4): A(f"ds_read_b128 {v(32+4*i,4)}, v22 offset:{i*8*144}")
    for i in range(4):
        A(f"s_waitcnt lgkmcnt({3-i})")
        A(f"buffer_store_dwordx4 {v(32+4*i,4)}, v18, s[12:15], s18 offen sc1")
        if i < 3: A("s_add_u32 s18, s18, 0x80000")
    A("s_mov_b32 s64, 0")
    A("s_branch K1_arrive")
    A.label("K1_gemv")
    A(f"s_sub_u32 s3, s2, {K1_SLAB}")
    A.label("K1_gv0")
    A("s_load_dwordx4 s[16:19], s[0:1], 72")
    A("s_and_b32 s24, s3, 7")
    A("s_lshl_b32 s24, s24, 1")
    A("s_bfe_u32 s25, s3, 0x10003")
    A("s_add_u32 s24, s24, s25")
    A("s_andn2_b32 s3, s3, 15")
    A("s_add_u32 s3, s3, s24")
    A("v_lshrrev_b32 v1, 2, v0")
    A("v_and_b32 v2, 3, v0")
    A(f"v_mul_u32_u24 v3, {8*6144}, v1")
    A("v_lshl_add_u32 v3, v2, 4, v3")
    A("s_lshl_b32 s40, s3, 6")
    for i in range(1, 8): A(f"s_add_u32 s{40+i}, s{39+i}, 6144")
    A("v_lshlrev_b32 v4, 4, v1")
    A("s_waitcnt lgkmcnt(0)")
    srd(A, 8, 18, 512*3072*2)
    srd(A, 12, 16, 1024)
    D = 32
    A("s_cmp_lt_u32 s65, 4")
    A("s_cbranch_scc0 K1_gvnl")
    if int(os.environ.get("DLY", "0")):
        A("s_lshr_b32 s24, s3, 4")
        A("s_cmp_eq_u32 s24, 1")
        A("s_cbranch_scc1 K1_gvnd")
        A(f"s_sleep {os.environ['DLY']}")
        A.label("K1_gvnd")
    A("buffer_load_dwordx4 v[12:15], v4, s[12:15], 0 offen")
    for i in range(8): A(f"buffer_load_dwordx4 {v(D+4*i,4)}, v3, s[8:11], s{40+i} offen")
    A.label("K1_gvnl")
    tk("g")
    if PST: stamp(A, 9)
    srd(A, 12, 4, LOW_BYTES)
    A("v_and_b32 v6, 63, v0")
    A("v_lshrrev_b32 v5, 4, v0")
    A("v_lshlrev_b32 v5, 7, v5")
    A("v_lshl_add_u32 v5, v2, 5, v5")
    A("v_and_b32 v7, 31, v0")
    A("v_bfe_u32 v8, v0, 5, 1")
    A("v_lshlrev_b32 v8, 10, v8")
    A("v_lshl_add_u32 v8, v7, 2, v8")
    for j in range(8): A(f"v_mov_b32 v{64+j}, 0")
    A("s_cmp_lt_u32 s3, 16")
    A("s_cbranch_scc0 K1_nocos")
    A("v_lshrrev_b32 v9, 6, v0")
    A("v_lshl_add_u32 v9, v9, 5, v7")
    A("v_cmp_eq_u32 vcc, 32, v0")
    A("v_mov_b32 v10, 0x100")
    A("v_cndmask_b32 v9, v9, v10, vcc")
    A("v_cvt_f32_u32 v9, v9")
    A(f"v_mul_f32 v9, {fl(1/512)}, v9")
    A("s_lshl_b32 s24, s3, 5")
    A("v_cvt_f32_u32 v10, s24")
    A("v_mul_f32 v10, v9, v10")
    for k in range(32): A(f"v_fmamk_f32 v{80+k}, v9, {fl(float(k))}, v10")
    for k in range(32): A(f"v_cos_f32 v{80+k}, v{80+k}")
    A.label("K1_nocos")
    A("s_cmp_lt_u32 s65, 4")
    A("s_cbranch_scc0 K1_gvb")
    A("s_waitcnt vmcnt(8)")
    for i in range(8):
        A(f"v_lshlrev_b32 v{16+i}, 16, v{12+(i>>1)}" if i % 2 == 0 else f"v_and_b32 v{16+i}, 0xffff0000, v{12+(i>>1)}")
        A(f"v_mul_f32 v{24+i}, {fl(-1.4426950408889634)}, v{16+i}")
    for i in range(8): A(f"v_exp_f32 v{24+i}, v{24+i}")
    for i in range(8): A(f"v_add_f32 v{24+i}, 1.0, v{24+i}")
    for i in range(8): A(f"v_rcp_f32 v{24+i}, v{24+i}")
    for i in range(8): A(f"v_mul_f32 v{16+i}, v{16+i}, v{24+i}")
    for i in range(8): A(f"v_cvt_pk_bf16_f32 v{16+i}, v{16+i}, 0")
    for i in range(8): A(f"v_lshlrev_b32 v{24+i}, 16, v{16+i}")
    for i in range(8):
        A(f"s_waitcnt vmcnt({7-i})")
        for j in range(4):
            A(f"v_dot2c_f32_bf16 v{64+2*j}, v{16+i}, v{D+4*i+j}")
            A(f"v_dot2c_f32_bf16 v{65+2*j}, v{24+i}, v{D+4*i+j}")
    if PST: stamp(A, 10)
    for m in ("row_ror:4", "row_ror:8"):
        for j in range(8): A(f"v_add_f32_dpp v{64+j}, v{64+j}, v{64+j} {m} row_mask:0xf bank_mask:0xf")
    A("s_mov_b32 exec_lo, 0x000f000f")
    A("s_mov_b32 exec_hi, 0x000f000f")
    A("ds_write_b128 v5, v[64:67]")
    A("ds_write_b128 v5, v[68:71] offset:16")
    A("s_mov_b64 exec, -1")
    A("s_waitcnt lgkmcnt(0)")
    A.label("K1_gvb")
    A("s_barrier")
    A("v_cmp_gt_u32 vcc, 64, v0")
    A("s_and_saveexec_b64 s[30:31], vcc")
    A("s_cbranch_execz K1_gv2")
    for i in range(8): A(f"ds_read_b32 v{16+i}, v8 offset:{128*i}")
    A("s_lshr_b32 s28, s3, 4")
    A("s_and_b32 s29, s3, 15")
    A("s_lshl_b32 s29, s29, 5")
    A("v_add_u32 v10, s29, v7")
    A("v_sub_u32 v11, 0x200, v10")
    A("v_and_b32 v11, 0xff, v11")
    A("v_cmp_gt_u32 vcc, 0x100, v10")
    A("v_cndmask_b32 v12, v11, v10, vcc")
    A("v_cndmask_b32 v13, 32, 0, vcc")
    A("v_lshrrev_b32 v14, 5, v12")
    A("v_and_b32 v12, 31, v12")
    A("v_lshl_add_u32 v12, v14, 6, v12")
    A("v_add_u32 v12, v12, v13")
    A("s_sub_u32 s32, s28, 2")
    A("s_cmp_lt_u32 s32, 3")
    A("s_cselect_b64 vcc, -1, 0")
    A("v_cndmask_b32 v10, v10, v12, vcc")
    A("v_lshlrev_b32 v10, 2, v10")
    A("s_lshl_b32 s33, s28, 11")
    A(f"s_add_u32 s33, s33, {MOD_OFF}")
    A("s_cmp_eq_u32 s28, 1")
    A("s_cselect_b32 s34, 1.0, 0")
    A(f"s_cselect_b32 s35, {fl(1/256)}, 1.0")
    A("s_cmp_eq_u32 s28, 4")
    A("s_cselect_b32 s34, 1.0, s34")
    A("s_cmp_eq_u32 s28, 2")
    A(f"s_cselect_b32 s35, {fl(256.0)}, s35")
    A("s_waitcnt lgkmcnt(0)")
    for st in (4, 2, 1):
        for i in range(st): A(f"v_add_f32 v{16+i}, v{16+i}, v{16+st+i}")
    A("v_mov_b32 v17, v16")
    A("v_permlane32_swap_b32 v16, v17")
    A("v_add_f32 v16, v16, v17")
    A("v_cvt_pk_bf16_f32 v16, v16, 0")
    A("v_lshlrev_b32 v16, 16, v16")
    A("v_add_f32 v16, s34, v16")
    A("v_cvt_pk_bf16_f32 v16, v16, 0")
    A("v_lshlrev_b32 v16, 16, v16")
    A("v_mul_f32 v16, s35, v16")
    A("s_mov_b32 exec_hi, 0")
    A("buffer_store_dword v16, v10, s[12:15], s33 offen sc1")
    A("ds_write_b32 v8, v16 offset:4096")
    A("s_waitcnt lgkmcnt(0)")
    A.label("K1_gv2")
    A("s_mov_b64 exec, -1")
    A("s_cmp_lt_u32 s3, 16")
    A("s_cbranch_scc0 K1_gv3")
    A("s_barrier")
    A("v_mov_b32 v9, 0")
    for k in range(8): A(f"ds_read_b128 {v(16+4*k,4)}, v9 offset:{4096+16*k}")
    A("v_lshlrev_b32 v10, 2, v0")
    A("s_lshl_b32 s24, s3, 11")
    A(f"s_add_u32 s24, s24, {SHP_OFF}")
    A("s_waitcnt lgkmcnt(0)")
    A("v_mul_f32 v12, v16, v80")
    A("v_mul_f32 v13, v17, v81")
    for k in range(2, 32): A(f"v_fmac_f32 v{12+(k&1)}, v{16+k}, v{80+k}")
    A("v_add_f32 v12, v12, v13")
    A("buffer_store_dword v12, v10, s[12:15], s24 offen sc1")
    A("s_branch K1_arrive")
    A.label("K1_gv3")
    A("s_waitcnt vmcnt(0)")
    A("s_branch K1_arr2")
    A.label("K1_rel")
    A(f"s_sub_u32 s36, s2, {K1_SLAB + K1_GEMV}")
    A("s_waitcnt lgkmcnt(0)")
    tk("r")
    A("s_cmp_eq_u32 s65, 0")
    A("s_cbranch_scc0 K1_done")
    A("s_cmp_lt_u32 s36, 41")
    A("s_cbranch_scc0 K1_done")
    prefill(A)
    A("s_branch K1_arr3")
    A.label("K1_arrive")
    if PST: stamp(A, 12)
    A("s_waitcnt vmcnt(0)")
    if PST: stamp(A, 13)
    A("s_barrier")
    A.label("K1_arr2")
    A("s_cmp_eq_u32 s65, 0")
    A("s_cbranch_scc0 K1_done")
    A.label("K1_arr3")
    arrive(A, "s64", "z")
    A.label("K1_done")
    A("s_mov_b64 exec, -1")

def sidejob(A):
    D = 192; O = 224; AD = 144
    A(f"s_cmp_lt_u32 s2, {K1_SLAB}")
    A("s_cbranch_scc1 SJ_end")
    A(f"s_cmp_lt_u32 s2, {K1_SLAB + K1_GEMV}")
    A("s_cbranch_scc0 SJ_r")
    A(f"s_add_u32 s52, s2, {576 - K1_SLAB}")
    A("s_cmp_eq_u32 s3, 6")
    A("s_cbranch_scc0 SJ_end")
    A("s_branch SJ_go")
    A.label("SJ_r")
    A("s_sub_u32 s52, s3, 1")
    A("s_cmp_lt_u32 s52, 6")
    A("s_cbranch_scc0 SJ_end")
    A("s_mul_i32 s52, s52, 96")
    A("s_add_u32 s52, s52, s2")
    A(f"s_sub_u32 s52, s52, {K1_SLAB + K1_GEMV}")
    if int(os.environ.get("DLY", "0")): A(f"s_sleep {os.environ['DLY']}")
    A.label("SJ_go")
    A("s_load_dwordx4 s[16:19], s[0:1], 48")
    A("s_load_dwordx2 s[14:15], s[0:1], 64")
    A("s_cmp_ge_u32 s52, 448")
    A("s_cbranch_scc1 SJ_d")
    A("v_mov_b32 v130, v5")
    A("s_lshr_b32 s44, s52, 5")
    A("s_and_b32 s45, s52, 31")
    A("s_lshr_b32 s46, s45, 2")
    A("s_lshl_b32 s46, s46, 5")
    A("s_and_b32 s47, s45, 1")
    A("s_lshl_b32 s47, s47, 4")
    A("s_add_u32 s46, s46, s47")
    A("v_lshl_add_u32 v131, v4, 3, s46")
    A("s_bitcmp1_b32 s45, 1")
    A("s_cbranch_scc1 SJ_mir")
    for r in range(8): A(f"s_mov_b32 s{28+r}, {r*3584}")
    A("v_mov_b32 v132, v131")
    A("s_branch SJ_gu2")
    A.label("SJ_mir")
    for r in range(8): A(f"s_mov_b32 s{28+r}, {(7-r)*3584}")
    A("v_sub_u32 v131, 505, v131")
    A("v_cmp_eq_u32 vcc, 505, v131")
    A("v_mov_b32 v132, 249")
    A("v_cndmask_b32 v132, v131, v132, vcc")
    A.label("SJ_gu2")
    A("v_mul_u32_u24 v131, 3584, v131")
    A("v_mul_u32_u24 v132, 3584, v132")
    A("s_lshl_b32 s46, s44, 8")
    A("v_and_b32 v133, 15, v3")
    A("v_lshl_add_u32 v133, v133, 4, s46")
    A("v_add_u32 v131, v131, v133")
    A("v_add_u32 v132, v132, v133")
    A("s_and_b32 s46, s44, 1")
    A(f"s_mul_i32 s46, s46, {WQC}")
    A("s_lshr_b32 s47, s44, 1")
    A("s_lshl_b32 s47, s47, 15")
    A("s_add_u32 s46, s46, s47")
    A("s_lshl_b32 s47, s45, 10")
    A("s_add_u32 s54, s46, s47")
    for q in range(1, 8): A(f"s_add_u32 s{54+q}, s{53+q}, {2*WQC}")
    A("s_waitcnt lgkmcnt(0)")
    A("v_cmp_gt_u32 vcc, 16, v3")
    A("v_mov_b32 v134, s18")
    A("v_mov_b32 v135, s16")
    A("v_cndmask_b32 v134, v134, v135, vcc")
    A("v_mov_b32 v135, s19")
    A("v_mov_b32 v136, s17")
    A("v_cndmask_b32 v135, v135, v136, vcc")
    A("s_branch SJ_ld")
    A.label("SJ_d")
    A("s_sub_u32 s52, s52, 448")
    A("s_and_b32 s44, s52, 7")
    A("s_lshr_b32 s45, s52, 4")
    A("s_bfe_u32 s46, s52, 0x10003")
    A("s_lshl_b32 s47, s45, 7")
    A("s_add_u32 s47, s47, s44")
    A("v_lshl_add_u32 v131, v4, 5, s47")
    A("v_lshlrev_b32 v131, 10, v131")
    A("s_lshl_b32 s47, s46, 9")
    A("v_lshl_add_u32 v133, v3, 4, s47")
    A("v_add_u32 v131, v131, v133")
    A("v_mov_b32 v132, v131")
    A("v_lshrrev_b32 v130, 3, v3")
    A("v_mul_u32_u24 v130, 28672, v130")
    A("v_lshl_add_u32 v130, v4, 9, v130")
    A("v_and_b32 v133, 7, v3")
    A("v_lshl_add_u32 v130, v133, 4, v130")
    for r in range(8): A(f"s_mov_b32 s{28+r}, {(64*(r>>2) + 8*(r&3))*1024}")
    A(f"s_mul_i32 s44, s44, {WQC}")
    A(f"s_mul_i32 s46, s46, {4*28672}")
    A("s_add_u32 s44, s44, s46")
    A("s_lshl_b32 s45, s45, 11")
    A("s_add_u32 s44, s44, s45")
    for q in range(8): A(f"s_add_u32 s{54+q}, s44, {WQD + (q>>2)*1024 + (q&3)*128}")
    A("s_waitcnt lgkmcnt(0)")
    A("v_mov_b32 v134, s14")
    A("v_mov_b32 v135, s15")
    A.label("SJ_ld")
    for r in range(8):
        A(f"v_add_u32 v133, s{28+r}, {'v132' if r == 0 else 'v131'}")
        A(f"v_add_co_u32 v{AD+2*r}, vcc, v134, v133")
        A(f"v_addc_co_u32 v{AD+1+2*r}, vcc, 0, v135, vcc")
        A(f"global_load_dwordx4 {v(D+4*r,4)}, {v(AD+2*r,2)}, off")
    srd(A, 12, 4, WQ_BYTES, WQ_OFF)
    A("s_mov_b32 s48, 0x05040100")
    A("s_mov_b32 s49, 0x07060302")
    for rp in range(4):
        A(f"s_waitcnt vmcnt({6-2*rp})")
        for c in range(4):
            A(f"v_perm_b32 v{O+8*c+rp}, v{D+8*rp+4+c}, v{D+8*rp+c}, s48")
            A(f"v_perm_b32 v{O+8*c+4+rp}, v{D+8*rp+4+c}, v{D+8*rp+c}, s49")
    for q in range(8):
        A(f"buffer_store_dwordx4 {v(O+4*q,4)}, v130, s[12:15], s{54+q} offen sc1")
    A.label("SJ_end")

def ticket(A, lds):
    A("s_cmp_eq_u32 s65, 7")
    A("s_cbranch_scc0 TK_bar")
    A("s_mov_b32 s68, 8")
    A.label("TK_chk")
    A("s_waitcnt lgkmcnt(0)")
    A("s_cmp_lt_u32 s70, 32")
    A("s_cbranch_scc1 TK_ok")
    A("s_add_u32 s71, s71, 1")
    A("s_and_b32 s71, s71, 7")
    A("s_lshl_b32 s69, s71, 2")
    A("s_add_u32 s69, s69, 32")
    A("s_mov_b32 s70, 1")
    A("s_atomic_add s70, s[66:67], s69 glc")
    A("s_sub_u32 s68, s68, 1")
    A("s_cbranch_scc0 TK_chk")
    A("s_waitcnt lgkmcnt(0)")
    A.label("TK_ok")
    A("s_lshl_b32 s70, s70, 3")
    A("s_add_u32 s70, s70, s71")
    A("v_mov_b32 v6, s70")
    A(f"v_mov_b32 v7, {lds}")
    A("ds_write_b32 v7, v6")
    A("s_waitcnt lgkmcnt(0)")
    A.label("TK_bar")
    A("s_barrier")
    A(f"v_mov_b32 v7, {lds}")
    A("ds_read_b32 v6, v7")
    A("s_waitcnt lgkmcnt(0)")
    A("v_readfirstlane_b32 s2, v6")
    A("s_and_b32 s2, s2, 255")
```

```python
from gen_common import *
from gen_p0 import phase0, sidejob
import math

MATL = 65536
ZL = 131072
SHL = ZL + 8192
STATL = SHL + 256
GOL = STATL + 1024
PSTL = GOL + 64
KC_LDS = PSTL + 8192
REDL = 65536; RCH = 1056; RSRC = 8 * RCH
W = 128
E = lambda k, d: int(os.environ.get(k, str(d)))
W0 = E("W0", 4)
LG = E("LG", 8)
HG = E("HG", 12)
W7E = E("W7E", 8)
PK_ = E("PK", 18)
N2PRE = E("N2PRE", 0)
TCH = 0
BPB = E("BPB", 0)
LDL = 0
LWE = E("LWE", 0)
SLG = E("SLG", 2)
HW1 = E("HW1", 32)
PAR = E("PAR", 1)
PKL = E("PKL", 1)
HWO = 0
HE = E("HE", 0)
SDL = E("SDL", 1)
H2B = E("H2B", 2)
HK = E("HK", 7)
SL1 = E("SL1", 2); SL2 = E("SL2", 4)
SPIN = 100000

def gen_km():
    A = Asm()
    A("s_cmp_ge_u32 s2, 256")
    A("s_cbranch_scc1 KC_end")
    stamp_init(A, 22); stamp(A, 0)
    phase0(A)
    stamp(A, 17)
    if int(os.environ.get("P0ST", "0")):
        stamp_flush(A, 0, 22)
        A("s_endpgm")
    A("s_mov_b64 s[50:51], s[66:67]")
    A("s_load_dwordx2 s[4:5], s[0:1], 104")
    A("s_load_dwordx2 s[6:7], s[0:1], 0")
    A("s_load_dwordx2 s[68:69], s[0:1], 88")
    A("v_lshrrev_b32 v1, 6, v0")
    A("v_readfirstlane_b32 s3, v1")
    A("s_bfe_u32 s20, s2, 0x30003")
    A("s_and_b32 s21, s2, 7")
    A("s_lshl_b32 s21, s21, 2")
    A("s_lshr_b32 s22, s2, 6")
    A("s_add_u32 s21, s21, s22")
    A("v_and_b32 v2, 63, v0")
    A("v_and_b32 v3, 31, v2")
    A("v_lshrrev_b32 v4, 5, v2")
    A("v_lshlrev_b32 v5, 4, v2")
    A("v_lshlrev_b32 v6, 5, v2")
    A("s_add_u32 s70, s3, s20")
    A("s_and_b32 s70, s70, 7")
    A("s_lshl_b32 s25, s3, 13")
    A("s_lshl_b32 s26, s70, 13")
    CA = 64; X = 72; Y = 80
    A("s_and_b32 s22, s70, 1")
    A("s_lshl_b32 s22, s22, 3")
    for i in range(8):
        A(f"s_add_u32 s24, s22, {i}")
        A(f"v_xor_b32 v{Y+i}, s24, v2")
        A(f"v_lshlrev_b32 v{Y+i}, 4, v{Y+i}")
    A("s_lshl_b32 s24, s21, 16")
    A("s_add_u32 s24, s24, s26")
    A(f"s_mov_b32 s27, {MOD_OFF + 2048}")
    A("s_mov_b32 m0, s26")
    def dma_issue():
        A("s_waitcnt lgkmcnt(0)")
        srd(A, 8, 4, LOW_BYTES, 0)
        A(f"buffer_load_dwordx4 {v(CA,4)}, v6, s[8:11], s27 offen")
        A(f"buffer_load_dwordx4 {v(CA+4,4)}, v6, s[8:11], s27 offen offset:16")
        for i in range(4):
            A(f"buffer_load_dwordx4 v{Y+i}, s[8:11], s24 offen offset:{i*1024} lds")
        A("s_add_u32 s24, s24, 4096")
        A("s_add_u32 m0, s26, 4096")
        for i in range(4, 8):
            A(f"buffer_load_dwordx4 v{Y+i}, s[8:11], s24 offen offset:{(i&3)*1024} lds")
    def gowait(tag, off):
        A(f"s_mov_b32 s47, {SPIN}")
        A("v_mov_b32 v12, 0")
        A.label(f"KC_gw{tag}")
        A(f"global_load_dword v13, v12, s[50:51] offset:{128 + off} sc1")
        A("s_waitcnt vmcnt(0)")
        A("v_cmp_eq_u32 vcc, 1, v13")
        A(f"s_cbranch_vccnz KC_gg{tag}")
        if SLG: A(f"s_sleep {SLG}")
        A("s_sub_u32 s47, s47, 1")
        A(f"s_cbranch_scc0 KC_gw{tag}")
        A.label(f"KC_gg{tag}")
    G = 32; GX = 56; P = 88; DK = 24; K2 = 16
    Gr = lambda i: G + 8*(i % 3)
    A("v_lshlrev_b32 v8, 3, v2")
    A("v_cvt_f32_u32 v8, v8")
    A(f"v_mul_f32 v{DK}, {fl(1/512)}, v8")
    for k in range(1, 8): A(f"v_add_f32 v{DK+k}, {fl(k/512)}, v{DK}")
    A("s_and_b32 s28, s3, 3")
    A("s_lshl_b32 s28, s28, 3")
    A("s_lshl_b32 s29, s20, 5")
    A("s_add_u32 s28, s28, s29")
    A("s_cmp_lt_u32 s3, 4")
    A(f"s_cselect_b32 s29, 0, {fl(0.25)}")
    A("s_lshl_b32 s30, s20, 3")
    A("s_add_u32 s30, s30, s3")
    A("s_cmp_eq_u32 s30, 4")
    A("s_cselect_b32 s31, 0x100, s28")
    A("s_cselect_b32 s32, 0, s29")
    A("v_cvt_f32_u32 v9, s31")
    A("v_cvt_f32_u32 v10, s28")
    for k in range(8): A(f"v_cos_f32 v{K2+k}, v{DK+k}")
    for k in range(8): A(f"v_fma_f32 v{GX+k}, v{DK+k}, v9, s32")
    for k in range(8): A(f"v_fma_f32 v{G+k}, v{DK+k}, v10, s29")
    for k in range(8): A(f"v_add_f32 v{G+8+k}, v{G+k}, v{DK+k}")
    for k in range(8): A(f"v_cos_f32 v{GX+k}, v{GX+k}")
    for k in range(16): A(f"v_cos_f32 v{G+k}, v{G+k}")
    for k in range(8): A(f"v_add_f32 v{K2+k}, v{K2+k}, v{K2+k}")
    XD = 120; GA = 104; XS = 14
    A("s_and_b32 s36, s3, 1")
    A("s_bfe_u32 s37, s3, 0x10001")
    A("s_cmp_lt_u32 s3, 4")
    A("s_cbranch_scc1 KC_noxl")
    A("s_waitcnt lgkmcnt(0)")
    A("v_lshlrev_b32 v7, 6, v3")
    A("v_add_u32 v7, s21, v7")
    A("s_cmp_eq_u32 s36, 0")
    A("s_cbranch_scc1 KC_tok_done")
    A("v_add_u32 v8, 32, v7")
    A("v_sub_u32 v7, 0x800, v7")
    A("s_cmp_eq_u32 s21, 0")
    A("s_cselect_b64 vcc, -1, 0")
    A("v_cndmask_b32 v7, v7, v8, vcc")
    A.label("KC_tok_done")
    srd(A, 40, 6, 0x200000)
    A("v_lshlrev_b32 v8, 10, v7")
    A("s_lshl_b32 s38, s20, 6")
    A("v_lshl_add_u32 v9, v4, 4, s38")
    A("v_sub_u32 v10, 1008, v9")
    A("s_cmp_eq_u32 s37, 0")
    A("s_cselect_b64 vcc, -1, 0")
    A("s_cselect_b32 s44, 32, -32")
    A("v_cndmask_b32 v10, v10, v9, vcc")
    A("v_add_u32 v10, v8, v10")
    A("v_add_u32 v11, s44, v10")
    A(f"buffer_load_dwordx4 {v(XD,4)}, v10, s[40:43], 0 offen")
    A(f"buffer_load_dwordx4 {v(XD+4,4)}, v11, s[40:43], 0 offen")
    A(f"buffer_load_ushort v{XS+1}, v11, s[40:43], 0 offen offset:16")
    A("v_sub_u32 v11, 0x400, v9")
    A("v_cmp_eq_u32 vcc, 0, v9")
    A("v_mov_b32 v12, 0x200")
    A("s_lshl_b32 s39, s20, 8")
    A("v_cndmask_b32 v11, v11, v12, vcc")
    A("v_add_u32 v11, v8, v11")
    A(f"buffer_load_ushort v{XS}, v11, s[40:43], 0 offen")
    A.label("KC_noxl")
    A("s_and_b32 s22, s3, 1")
    A("s_lshl_b32 s22, s22, 3")
    A(f"s_add_u32 s30, s25, {MATL}")
    for i in range(8):
        A(f"s_add_u32 s24, s22, {i}")
        A(f"v_xor_b32 v{X+i}, s24, v2")
        A(f"v_lshl_add_u32 v{X+i}, v{X+i}, 4, s30")
    A("s_lshl_b32 s24, s21, 16")
    A("s_add_u32 s24, s24, s26")
    A("s_waitcnt lgkmcnt(0)")
    sidejob(A)
    A("s_cmp_lt_u32 s3, 4")
    A("s_cbranch_scc1 KC_mgd")
    CT = 160; ST = 176; M = 224
    A("v_cvt_f32_u32 v9, v7")
    A(f"v_mul_f32 v9, {fl(1/2048)}, v9")
    A("v_lshlrev_b32 v10, 2, v4")
    A("v_cvt_f32_u32 v10, v10")
    A("v_mul_f32 v10, v9, v10")
    for k in range(16):
        s2c = 16*(k >> 3) + 8*((k >> 2) & 1) + (k & 3)
        A(f"v_fmamk_f32 v{ST+k}, v9, {fl(float(s2c))}, v10")
    for k in range(16):
        A(f"v_cos_f32 v{CT+k}, v{ST+k}")
        A(f"v_sin_f32 v{ST+k}, v{ST+k}")
    for k in range(8):
        A(f"v_cvt_pk_f16_f32 v{M+k}, v{CT+2*k}, v{CT+2*k+1}")
        A(f"v_cvt_pk_f16_f32 v{M+16+k}, v{ST+2*k}, v{ST+2*k+1}")
    A("s_mov_b32 s52, 0x80008000")
    A("s_cmp_eq_u32 s36, 0")
    A("s_cselect_b32 s53, 0, s52")
    A("s_cselect_b32 s56, -1, 0")
    A("s_cselect_b32 s57, 0, -1")
    A("s_cmp_eq_u32 s37, 0")
    A("s_cselect_b32 s54, 0, s52")
    A("s_xor_b32 s55, s53, s54")
    A("s_xor_b32 s55, s55, s52")
    A("s_cmp_eq_u32 s21, 0")
    A("s_cbranch_scc1 KC_mspec")
    for k in range(8):
        A(f"v_xor_b32 v{M+8+k}, s53, v{M+16+k}")
        A(f"v_xor_b32 v{M+24+k}, s55, v{M+k}")
        A(f"v_xor_b32 v{M+16+k}, s54, v{M+16+k}")
    A("s_branch KC_mgd")
    A.label("KC_mspec")
    for k in range(8):
        A(f"v_xor_b32 v{M+16+k}, s54, v{M+16+k}")
        A(f"v_and_b32 v{M+8+k}, s57, v{M+k}")
        A(f"v_and_b32 v{M+k}, s56, v{M+k}")
        A(f"v_and_b32 v{M+24+k}, s57, v{M+16+k}")
        A(f"v_and_b32 v{M+16+k}, s56, v{M+16+k}")
    A.label("KC_mgd")
    stamp(A, 16)
    A("s_cmp_eq_u32 s3, 0")
    A("s_cbranch_scc0 KC_b0")
    gowait("1", 0)
    A.label("KC_b0")
    A("s_barrier")
    stamp(A, 19)
    dma_issue()
    A(f"v_mov_b32 v12, {GOL}")
    A("v_mov_b32 v128, 0\nv_mov_b32 v129, 0\nv_mov_b32 v130, 0\nv_mov_b32 v131, 0")
    A("ds_write_b128 v12, v[128:131]")
    A("ds_write_b128 v12, v[128:131] offset:16")
    A("s_waitcnt vmcnt(8)")
    A("s_barrier")
    A("s_cmp_eq_u32 s3, 0")
    A("s_cbranch_scc0 KC_nodw")
    A("s_cmp_lt_u32 s2, 128")
    A("s_cbranch_scc1 KC_nodw")
    A("s_and_b32 s46, s2, 15")
    A("s_lshl_b32 s46, s46, 7")
    A("s_lshr_b32 s47, s2, 4")
    A("s_lshl_b32 s47, s47, 2")
    A("s_add_u32 s46, s46, s47")
    A(f"s_add_u32 s46, s46, {FLAG_OFF + F3_REL - 32}")
    A("v_mov_b32 v12, 0")
    A("v_mov_b32 v13, 1")
    A("s_mov_b64 exec, 1")
    A("buffer_store_dword v13, v12, s[8:11], s46 offen sc1")
    A("s_mov_b64 exec, -1")
    A.label("KC_nodw")
    for base in (GX, G, G + 8):
        for j in range(4): A(f"v_pk_mul_f32 {v(base+2*j,2)}, {v(base+2*j,2)}, {v(CA+2*j,2)}")
    PP = [88, 92, 96, 100]
    for i in range(8):
        if i >= 2:
            for j in range(4):
                A(f"v_pk_fma_f32 {v(Gr(i)+2*j,2)}, {v(K2+2*j,2)}, {v(Gr(i-1)+2*j,2)}, {v(Gr(i-2)+2*j,2)} neg_lo:[0,0,1] neg_hi:[0,0,1]")
        src = GX if i == 0 else Gr(i)
        if i >= 4: A("s_waitcnt lgkmcnt(3)")
        for j in range(4): A(f"v_cvt_pk_f16_f32 v{PP[i&3]+j}, v{src+2*j}, v{src+2*j+1}")
        A(f"ds_write_b128 v{X+i}, {v(PP[i&3],4)} offset:{i*1024}")
    if PAR:
        A("s_and_b32 s60, s2, 2")
        A("s_lshl_b32 s60, s60, 1")
        A("s_bfe_u32 s22, s2, 0x20003")
        A("s_add_u32 s60, s60, s22")
        A("s_lshl_b32 s60, s60, 1")
        A("s_and_b32 s22, s2, 1")
        A("s_add_u32 s60, s60, s22")
    else:
        A("s_and_b32 s60, s2, 3")
        A("s_lshl_b32 s60, s60, 2")
        A("s_bfe_u32 s22, s2, 0x20003")
        A("s_add_u32 s60, s60, s22")
    A("s_lshr_b32 s66, s2, 5")
    A("s_bfe_u32 s61, s2, 0x10002")
    A("s_lshl_b32 s61, s61, 3")
    A("s_add_u32 s61, s61, s66")
    A("s_lshl_b32 s61, s61, 1")
    A("s_and_b32 s22, s60, 1")
    A("s_add_u32 s61, s61, s22")
    srd(A, 12, 4, WQ_BYTES, WQ_OFF)
    srd(A, 16, 4, 0x400000, X1_OFF)
    A(f"s_mul_i32 s62, s60, {WQC}")
    A("s_lshl_b32 s22, s3, 15")
    A("s_add_u32 s62, s62, s22")
    A("s_lshl_b32 s63, s66, 12")
    A("s_add_u32 s64, s62, s63")
    if PAR: A("s_and_b32 s67, s60, 6")
    else:
        A("s_and_b32 s67, s60, 2")
        A("s_lshl_b32 s67, s67, 1")
    A("s_add_u32 s67, s67, s3")
    A("s_and_b32 s67, s67, 7")
    A("s_lshl_b32 s22, s21, 1")
    A("s_add_u32 s70, s70, s22")
    A("s_and_b32 s70, s70, 7")
    A(f"s_mul_i32 s65, s70, {WQC}")
    A("s_mul_i32 s22, s20, 28672")
    A("s_add_u32 s65, s65, s22")
    A(f"s_add_u32 s65, s65, {WQD}")
    A("s_mov_b32 s58, 0xffff0000")
    A("s_mov_b32 s59, 0x3f803f80")
    def wload(i):
        A(f"buffer_load_dwordx4 {v(W+4*i,4)}, v5, s[12:15], s64 offen offset:{(i&3)*1024}")
        if (i & 3) == 3 and i < 31:
            A("s_add_u32 s63, s63, 4096")
            A("s_and_b32 s63, s63, 0x7fff")
            A("s_add_u32 s64, s62, s63")
    DRQ = [16, 20, 24, 28, 32, 36, 40, 44, 48, 52, 56, 60, 88, 92, 80, 84,
           64, 68, 72, 76, 96, 100, 104, 108, 112, 116, 120, 124]
    DR = lambda lam, t: DRQ[2*lam + t]
    def dload(lam, lds=None, base="s65"):
        ft = lam % 7; vo = "v14" if lam < 7 else "v15"
        A(f"s_add_u32 s71, {base}, {ft*4096}")
        if lds is not None: A(f"s_add_u32 m0, s55, {lds}")
        for t in range(2):
            if lds is None: A(f"buffer_load_dwordx4 {v(DR(lam,t),4)}, {vo}, s[12:15], s71 offen offset:{t*1024}")
            else: A(f"buffer_load_dwordx4 {vo}, s[12:15], s71 offen offset:{t*1024} lds")
    def ldswait(tag, off, val):
        A(f"s_mov_b32 s47, {SPIN}")
        A.label(f"KC_ls{tag}")
        A(f"ds_read_b32 v12, v10 offset:{off}")
        A("s_sub_u32 s47, s47, 1")
        A(f"s_cbranch_scc1 KC_lg{tag}")
        A("s_waitcnt lgkmcnt(0)")
        A(f"v_cmp_le_u32 vcc, {val}, v12")
        A(f"s_cbranch_vccnz KC_lg{tag}")
        A("s_sleep 1")
        A(f"s_branch KC_ls{tag}")
        A.label(f"KC_lg{tag}")
    def side_addr():
        A("s_and_b32 s22, s21, 1")
        A("s_lshl_b32 s22, s22, 11")
        A("v_add_u32 v14, s22, v5")
        A("v_xor_b32 v15, 0x800, v14")
    stamp(A, 1)
    A("s_cmp_ge_u32 s3, 4")
    A("s_cbranch_scc1 KC_hi")
    AB, BB = 112, 120
    A("v_and_b32 v14, 15, v3")
    A("v_lshlrev_b32 v15, 10, v3")
    A("s_lshl_b32 s46, s36, 15")
    A("v_add_u32 v15, s46, v15")
    A("v_and_b32 v16, 19, v3")
    A("v_bfe_u32 v17, v3, 2, 1")
    A("v_lshl_or_b32 v16, v17, 3, v16")
    A("v_bfe_u32 v17, v3, 3, 1")
    A("v_lshl_or_b32 v16, v17, 2, v16")
    A("v_and_b32 v17, 15, v16")
    A("v_lshlrev_b32 v18, 10, v16")
    A("s_lshl_b32 s46, s37, 15")
    A(f"s_add_u32 s46, s46, {MATL}")
    A("v_add_u32 v18, s46, v18")
    A("v_xor_b32 v14, v14, v4")
    A("v_xor_b32 v17, v17, v4")
    for b in range(8):
        A(f"v_xor_b32 v19, {2*b}, v14")
        A(f"v_lshl_add_u32 v{AB+b}, v19, 4, v15")
        A(f"v_xor_b32 v19, {2*b}, v17")
        A(f"v_lshl_add_u32 v{BB+b}, v19, 4, v18")
    A("s_lshl_b32 s46, s3, 11")
    A(f"s_add_u32 s46, s46, {ZL}")
    A("v_add_u32 v19, s46, v5")
    A("s_waitcnt vmcnt(0) lgkmcnt(0)")
    A("s_barrier")
    stamp(A, 2)
    C = 64; FA = 32; FB = 48; DEP = 4
    def rd(ks):
        b, a_ = ks & 7, ks >> 3
        A(f"ds_read_b128 {v(FA+4*(ks%DEP),4)}, v{AB+b} offset:{a_*256}")
        A(f"ds_read_b128 {v(FB+4*(ks%DEP),4)}, v{BB+b} offset:{a_*256}")
    for ks in range(DEP - 1): rd(ks)
    for ks in range(32):
        if ks + DEP - 1 < 32: rd(ks + DEP - 1)
        out = min(DEP - 1, 31 - ks)
        A(f"s_waitcnt lgkmcnt({2*out})")
        A(f"v_mfma_f32_32x32x16_f16 {v(C,16)}, {v(FA+4*(ks%DEP),4)}, {v(FB+4*(ks%DEP),4)}, {'0' if ks==0 else v(C,16)}")
    for k in range(8):
        A(f"v_cvt_pk_f16_f32 v{24+k}, v{C+2*k}, v{C+2*k+1}")
    A("ds_write_b128 v19, v[24:27]")
    A("ds_write_b128 v19, v[28:31] offset:1024")
    A("s_waitcnt lgkmcnt(0)")
    A("s_barrier")
    stamp(A, 3)
    A(f"v_mov_b32 v10, {GOL}")
    ldswait("w1", 20, 1)
    stamp(A, 18)
    for i in range(32): wload(i)
    A("s_branch KC_ffn")
    A.label("KC_hi")
    A("s_setprio 1")
    A.label("KC_b1h")
    A("s_lshl_b32 s39, s20, 8")
    A("s_lshl_b32 s44, s37, 7")
    A("s_add_u32 s44, s39, s44")
    A(f"s_add_u32 s44, s44, {MOD_OFF + 4096}")
    A("v_lshlrev_b32 v12, 5, v4")
    for q in range(2):
        for z in range(2):
            A(f"buffer_load_dwordx4 {v(GA+8*q+4*z,4)}, v12, s[8:11], s44 offen offset:{64*q+16*z}")
    A("s_waitcnt vmcnt(4) lgkmcnt(0)")
    A.label("KC_b1h2")
    A("s_barrier")
    stamp(A, 2)
    SBR = 56; CBR = 72
    A("s_lshl_b32 s39, s20, 8")
    A("s_lshl_b32 s44, s37, 7")
    A("s_add_u32 s44, s39, s44")
    A(f"s_add_u32 s44, s44, {MOD_OFF + 3*2048}")
    A("v_lshlrev_b32 v1, 5, v4")
    for base, off in ((SBR, 0), (CBR, 2048)):
        for q in range(2):
            for z in range(2):
                A(f"buffer_load_dwordx4 {v(base+8*q+4*z,4)}, v1, s[8:11], s44 offen offset:{off+64*q+16*z}")
    A("s_cmp_eq_u32 s3, 7")
    A("s_cbranch_scc0 KC_nosl")
    A("s_cmp_eq_u32 s21, 0")
    A("s_cbranch_scc0 KC_nosl2")
    A("v_lshlrev_b32 v8, 2, v2")
    A("s_lshl_b32 s39, s20, 8")
    A(f"s_add_u32 s39, s39, {SHP_OFF}")
    for k in range(16):
        A(f"buffer_load_dword v{128+k}, v8, s[8:11], s39 offen offset:{(k&1)*2048}")
        if k & 1: A("s_add_u32 s39, s39, 4096")
    A.label("KC_nosl2")
    A(f"v_mov_b32 v10, {GOL}")
    A("v_and_b32 v12, 3, v2")
    A("v_min_u32 v12, 1, v12")
    A("v_lshlrev_b32 v12, 4, v12")
    A("v_lshrrev_b32 v13, 2, v2")
    A("v_lshl_add_u32 v12, v13, 7, v12")
    A(f"s_mov_b32 s46, {FLAG_OFF + F3_REL + 0}")
    A(f"s_mov_b32 s47, {SPIN}")
    A.label("KC_gw2")
    A("buffer_load_dwordx4 v[144:147], v12, s[8:11], s46 offen sc1")
    A("s_waitcnt vmcnt(0)")
    A("v_and_b32 v144, v144, v145")
    A("v_and_b32 v146, v146, v147")
    A("v_and_b32 v144, v144, v146")
    A("v_cmp_ne_u32 vcc, 1, v144")
    A("s_cbranch_vccz KC_gg2")
    A("s_sub_u32 s47, s47, 1")
    A("s_cbranch_scc0 KC_gw2")
    A.label("KC_gg2")
    A("v_mov_b32 v12, 1")
    A("ds_write_b32 v10, v12 offset:20")
    A.label("KC_nosl")
    A("v_lshlrev_b32 v13, 10, v4")
    A("v_lshl_add_u32 v13, v3, 4, v13")
    A("s_lshl_b32 s45, s21, 16")
    A("s_lshl_b32 s46, s20, 13")
    A("s_add_u32 s45, s45, s46")
    A("s_lshl_b32 s46, s37, 12")
    A("s_add_u32 s45, s45, s46")
    A("s_lshl_b32 s46, s36, 9")
    A("s_add_u32 s45, s45, s46")
    A(f"v_add_u32 v1, {ZL}, v5")
    A("s_lshl_b32 s46, s20, 1")
    A("s_add_u32 s46, s46, s37")
    A("s_cmp_eq_u32 s46, 1")
    A("s_cselect_b32 s46, 4096, 0")
    A("v_cmp_eq_u32 vcc, 0, v3")
    A("v_mov_b32 v6, s46")
    A("v_cndmask_b32 v6, 0, v6, vcc")
    A("v_add_u32 v6, v6, v1")
    A("s_cmp_eq_u32 s21, 0")
    A("s_cbranch_scc0 KC_mdone")
    A("s_cmp_eq_u32 s3, 7")
    A("s_cbranch_scc0 KC_mdone")
    A("s_waitcnt vmcnt(0)")
    for st in (8, 4, 2, 1):
        for i in range(st): A(f"v_add_f32 v{128+i}, v{128+i}, v{128+st+i}")
    A("v_lshlrev_b32 v8, 2, v2")
    A(f"v_add_u32 v8, {SHL}, v8")
    A("ds_write_b32 v8, v128")
    A("s_waitcnt lgkmcnt(0)")
    A.label("KC_mdone")
    XU = 16
    A("s_cmp_eq_u32 s37, 0")
    A("s_cbranch_scc0 KC_xum")
    for k in range(8):
        A(f"v_lshlrev_b32 v{XU+2*k}, 16, v{XD+k}")
        A(f"v_and_b32 v{XU+2*k+1}, s58, v{XD+k}")
    A("s_branch KC_xud")
    A.label("KC_xum")
    for q in range(2):
        A(f"v_lshlrev_b32 v{XU+8*q}, 16, v{XS+q}")
        for k in range(1, 8):
            el = 8 - k
            r = XD + 4*q + (el >> 1)
            if el & 1: A(f"v_and_b32 v{XU+8*q+k}, s58, v{r}")
            else: A(f"v_lshlrev_b32 v{XU+8*q+k}, 16, v{r}")
    A.label("KC_xud")
    A("s_cmp_eq_u32 s3, 7")
    A("s_cbranch_scc1 KC_nohg")
    A(f"v_mov_b32 v10, {GOL}")
    ldswait("w0", 20, 1)
    for i in range(HG): wload(i)
    A.label("KC_nohg")
    A("s_lshl_b32 s46, s21, 3")
    A("s_add_u32 s46, s46, s20")
    A("s_lshl_b32 s47, s46, 10")
    A("s_and_b32 s44, s3, 3")
    A("s_lshl_b32 s39, s44, 8")
    A("s_add_u32 s47, s47, s39")
    A(f"s_add_u32 s47, s47, {STS_OFF}")
    A("s_lshl_b32 s46, s46, 7")
    A("s_lshl_b32 s44, s44, 2")
    A("s_add_u32 s46, s46, s44")
    A(f"s_add_u32 s46, s46, {FLAG_OFF}")
    A("v_lshlrev_b32 v12, 3, v3")
    A("v_lshl_add_u32 v12, v4, 2, v12")
    A("v_mov_b32 v8, 0\nv_mov_b32 v9, 1\nv_mov_b32 v10, 0\nv_mov_b32 v11, 0")
    stamp(A, 18)
    A("s_barrier")
    stamp(A, 3)
    ZF = [32, 36, 40, 44, 48, 52, 120, 124]; C = 88
    for k in range(4): A(f"ds_read_b128 {v(ZF[k],4)}, v6 offset:{1024*k}")
    for k in range(4): A(f"ds_read_b128 {v(ZF[4+k],4)}, v1 offset:{4096+1024*k}")
    for k in range(4):
        A(f"s_waitcnt lgkmcnt({7-k})")
        A(f"v_mfma_f32_32x32x16_f16 {v(C,16)}, {v(ZF[k],4)}, {v(M+4*k,4)}, {'0' if k==0 else v(C,16)}")
    A("s_waitcnt lgkmcnt(0)")
    A("s_cmp_eq_u32 s20, 0")
    A("s_cbranch_scc0 KC_nz")
    A("s_mov_b32 exec_lo, 1")
    A("s_mov_b32 exec_hi, 1")
    for k in range(4, 8):
        for z in range(4): A(f"v_mov_b32 v{ZF[k]+z}, 0")
    A("s_mov_b64 exec, -1")
    A("s_nop 1")
    A.label("KC_nz")
    for k in range(4, 8):
        A(f"v_mfma_f32_32x32x16_f16 {v(C,16)}, {v(ZF[k],4)}, {v(M+4*k,4)}, {v(C,16)}")
    A("s_or_b32 s39, s21, s36")
    A("s_cmp_eq_u32 s39, 0")
    A("s_cbranch_scc0 KC_nosh")
    A("s_lshl_b32 s39, s37, 7")
    A(f"s_add_u32 s39, s39, {SHL}")
    A("v_lshl_add_u32 v6, v4, 5, s39")
    for q in range(2):
        for z in range(2):
            A(f"ds_read_b128 {v(32+8*q+4*z,4)}, v6 offset:{64*q+16*z}")
    A("s_waitcnt lgkmcnt(0)")
    A("s_mov_b32 exec_lo, 1")
    A("s_mov_b32 exec_hi, 1")
    for k in range(16):
        A(f"v_fmamk_f32 v{C+k}, v{32+k}, {fl(8.0)}, v{C+k}")
    A("s_mov_b64 exec, -1")
    A.label("KC_nosh")
    A("s_nop 7")
    A(f"s_waitcnt vmcnt({HG})")
    for k in range(16):
        A(f"v_fmac_f32 v{XU+k}, v{GA+k}, v{C+k}")
    for k in range(8):
        A(f"v_cvt_pk_bf16_f32 v{32+k}, v{XU+2*k}, v{XU+2*k+1}")
    for k in range(8):
        A(f"v_dot2c_f32_bf16 v10, s59, v{32+k}")
        A(f"v_dot2c_f32_bf16 v11, v{32+k}, v{32+k}")
    A("v_permlane32_swap_b32 v10, v11")
    A("v_add_f32 v10, v10, v11")
    A("v_min_u32 v10, -2, v10")
    A("buffer_store_dword v10, v12, s[8:11], s47 offen sc1")
    A("buffer_store_dwordx4 v[32:35], v13, s[16:19], s45 offen sc1")
    A("buffer_store_dwordx4 v[36:39], v13, s[16:19], s45 offen offset:2048 sc1")
    stamp(A, 4)
    for k in range(8):
        A(f"v_lshlrev_b32 v{XU+2*k}, 16, v{32+k}")
        A(f"v_and_b32 v{XU+2*k+1}, s58, v{32+k}")
    A("v_lshlrev_b32 v6, 3, v3")
    A("v_lshl_add_u32 v6, v4, 9, v6")
    A("s_lshl_b32 s39, s21, 13")
    A("s_lshl_b32 s44, s36, 8")
    A("s_add_u32 s39, s39, s44")
    A(f"s_add_u32 s39, s39, {STS_OFF}")
    A("s_add_u32 s44, s39, 4096")
    A(f"s_mov_b32 s47, {SPIN}")
    SG = 88
    if SDL: A(f"s_waitcnt vmcnt(2)")
    A.label("KC_sg")
    for j in range(8):
        A(f"buffer_load_dwordx2 {v(SG+2*j,2)}, v6, s[8:11], {'s39' if j < 4 else 's44'} offen offset:{(j&3)*1024} sc1")
    A("s_waitcnt vmcnt(0)")
    for j in range(5): A(f"v_max3_u32 v{104+j}, v{SG+3*j}, v{SG+3*j+1}, v{SG+3*j+2}")
    A(f"v_max3_u32 v104, v104, v105, v{SG+15}")
    A("v_max3_u32 v106, v106, v107, v108")
    A("v_max_u32 v104, v104, v106")
    A("v_cmp_eq_u32 vcc, -1, v104")
    A("s_cbranch_vccz KC_sgd")
    A("s_sub_u32 s47, s47, 1")
    A("s_cbranch_scc0 KC_sg")
    A.label("KC_sgd")
    stamp(A, 8)
    for st in (4, 2, 1):
        for w in range(st): A(f"v_pk_add_f32 {v(SG+2*w,2)}, {v(SG+2*w,2)}, {v(SG+2*(w+st),2)}")
    A(f"v_mov_b32 v{SG+2}, v{SG}")
    A(f"v_mov_b32 v{SG+3}, v{SG+1}")
    A(f"v_permlane32_swap_b32 v{SG}, v{SG+2}")
    A(f"v_permlane32_swap_b32 v{SG+1}, v{SG+3}")
    A(f"v_pk_add_f32 {v(SG,2)}, {v(SG,2)}, {v(SG+2,2)}")
    A(f"v_mul_f32 v{SG}, {fl(1/512)}, v{SG}")
    A(f"v_mul_f32 v{SG+1}, {fl(1/512)}, v{SG+1}")
    A(f"v_fma_f32 v{SG+1}, -v{SG}, v{SG}, v{SG+1}")
    A(f"v_max_f32 v{SG+1}, 0, v{SG+1}")
    A(f"v_add_f32 v{SG+1}, {fl(1e-5)}, v{SG+1}")
    A(f"v_rsq_f32 v{SG+2}, v{SG+1}")
    A(f"v_mul_f32 v{SG+3}, -v{SG}, v{SG+2}")
    for k in range(8): A(f"v_pk_fma_f32 {v(XU+2*k,2)}, {v(XU+2*k,2)}, {v(SG+2,2)}, {v(SG+2,2)} op_sel:[0,0,1] op_sel_hi:[1,0,1]")
    for k in range(8): A(f"v_pk_fma_f32 {v(XU+2*k,2)}, {v(XU+2*k,2)}, {v(CBR+2*k,2)}, {v(SBR+2*k,2)}")
    for k in range(8): A(f"v_cvt_pk_bf16_f32 v{40+k}, v{XU+2*k}, v{XU+2*k+1}")
    A(f"s_add_u32 s45, s45, {H2_REL}")
    A("buffer_store_dwordx4 v[40:43], v13, s[16:19], s45 offen sc1")
    A("buffer_store_dwordx4 v[44:47], v13, s[16:19], s45 offen offset:2048 sc1")
    A("s_mov_b64 exec, 1")
    A("s_waitcnt vmcnt(0)")
    A("buffer_store_dword v9, v8, s[8:11], s46 offen sc1")
    A("s_mov_b64 exec, -1")
    stamp(A, 5)
    A("s_cmp_eq_u32 s3, 7")
    A("s_cbranch_scc1 KC_w7a")
    for i in range(HG, HW1): wload(i)
    A("s_branch KC_ffn")
    A.label("KC_w7a")
    A.label("KC_ffn")
    srd(A, 48, 4, ACT_BYTES, ACT_OFF)
    A("s_lshl_b32 s24, s61, 16")
    A("s_lshl_b32 s25, s67, 13")
    A("s_add_u32 s24, s24, s25")
    A(f"s_add_u32 s24, s24, {H2_REL}")
    A("s_xor_b32 s25, s24, 0x10000")
    A("s_sub_u32 s27, s67, s66")
    A("s_and_b32 s27, s27, 7")
    A("s_lshl_b32 s27, s27, 13")
    A("s_lshl_b32 s52, s21, 3")
    A("s_add_u32 s52, s52, s70")
    A("s_mul_i32 s53, s52, 28672")
    A("s_lshl_b32 s52, s52, 7")
    A("s_and_b32 s22, s21, 1")
    A("s_lshl_b32 s22, s22, 5")
    A("s_add_u32 s52, s52, s22")
    A(f"s_add_u32 s52, s52, {F2_REL}")
    A("s_xor_b32 s23, s52, 32")
    A(f"s_add_u32 s56, s4, {FLAG_OFF}")
    A("s_addc_u32 s57, s5, 0")
    side_addr()
    A("s_cmp_lt_u32 s3, 4")
    A("s_cbranch_scc0 KC_nowd")
    for lam in range(8, 8 + LWE): dload(lam)
    A.label("KC_nowd")
    stamp(A, 6)
    A("s_lshl_b32 s44, s61, 3")
    A("s_add_u32 s44, s44, s67")
    A("s_lshl_b32 s44, s44, 7")
    A("s_xor_b32 s45, s44, 0x400")
    def poll1(tag, so):
        A(f"s_mov_b32 s47, {SPIN}")
        A.label(f"KC_poll{tag}")
        A(f"s_load_dwordx4 s[36:39], s[56:57], {so} glc")
        A("s_waitcnt lgkmcnt(0)")
        A("s_and_b64 s[36:37], s[36:37], s[38:39]")
        A("s_and_b32 s36, s36, s37")
        A("s_cmp_eq_u32 s36, 1")
        A(f"s_cbranch_scc1 KC_got{tag}")
        A("s_sub_u32 s47, s47, 1")
        A(f"s_cbranch_scc0 KC_poll{tag}")
        A.label(f"KC_got{tag}")
    def h2dma(so, ldsoff):
        for half in range(2):
            A(f"s_add_u32 m0, s27, {ldsoff + half*4096}")
            if half: A(f"s_add_u32 {so}, {so}, 4096")
            for i in range(4): A(f"buffer_load_dwordx4 v5, s[16:19], {so} offen offset:{i*1024} sc1 lds")
    poll1("a", "s44")
    stamp(A, 7)
    h2dma("s24", 0)
    A.label("KC_n1d")
    A("v_lshlrev_b32 v7, 10, v4")
    A("v_lshl_add_u32 v7, v3, 4, v7")
    A("v_mov_b32 v8, 0")
    A("v_mov_b32 v9, 1")
    A(f"v_mov_b32 v10, {GOL}")
    c0 = -2.0 * math.sqrt(2.0 / math.pi) * math.log2(math.e)
    A(f"s_mov_b32 s32, {fl(c0 * 0.044715)}")
    A(f"v_mov_b32 v11, {fl(c0)}")
    A("s_lshl_b32 s46, s61, 3")
    A("s_lshr_b32 s47, s60, 1")
    A("s_add_u32 s46, s46, s47")
    A("s_xor_b32 s47, s46, 8")
    A("s_mul_i32 s29, s46, 28672")
    A("s_mul_i32 s31, s47, 28672")
    A("s_lshl_b32 s30, s3, 1")
    A("s_and_b32 s28, s60, 1")
    A("s_add_u32 s30, s30, s28")
    A("s_lshl_b32 s30, s30, 11")
    A("s_add_u32 s29, s29, s30")
    A("s_add_u32 s31, s31, s30")
    A("s_lshl_b32 s28, s28, 3")
    A("s_add_u32 s28, s28, s3")
    A("s_lshl_b32 s28, s28, 2")
    A("s_lshl_b32 s33, s46, 7")
    A("s_add_u32 s33, s33, s28")
    A(f"s_add_u32 s33, s33, {FLAG_OFF + F2_REL}")
    A("s_xor_b32 s34, s33, 0x400")
    if H2B == 2:
        A("s_waitcnt vmcnt(0) lgkmcnt(0)")
        A("s_barrier")
    else:
        poll1("b", "s45")
        h2dma("s25", 65536)
        A("s_waitcnt vmcnt(8) lgkmcnt(0)")
        A("s_barrier")
    stamp(A, 9)
    def signal(off):
        A("s_mov_b64 exec, 1")
        A("s_waitcnt lgkmcnt(0)")
        A(f"ds_add_u32 v10, v9 offset:{off}")
        A("s_mov_b64 exec, -1")
    def flag(so):
        A("s_mov_b64 exec, 1")
        A("s_waitcnt vmcnt(0)")
        A(f"buffer_store_dword v9, v8, s[8:11], {so} offen sc1")
        A("s_mov_b64 exec, -1")
    def sreq(side): A(f"s_load_dwordx8 s[36:43], s[56:57], {'s52' if side == 0 else 's23'} glc")
    def stest(lo, hi):
        A(f"s_and_b32 s28, s{36+lo}, s{37+lo}")
        for k in range(lo + 2, hi): A(f"s_and_b32 s28, s28, s{36+k}")
        A("s_cmp_eq_u32 s28, 1")
    def spoll(tag, side, lo, hi):
        A(f"s_mov_b32 s47, {SPIN}")
        A.label(f"KC_pl{tag}")
        sreq(side)
        A("s_waitcnt lgkmcnt(0)")
        stest(lo, hi)
        A(f"s_cbranch_scc1 KC_gt{tag}")
        if SL2: A(f"s_sleep {SL2}")
        A("s_sub_u32 s47, s47, 1")
        A(f"s_cbranch_scc0 KC_pl{tag}")
        A.label(f"KC_gt{tag}")
    C = 16; GT = 48
    def park():
        ldswait(f"a{len(A.items)}", 4, 7)
        A("s_and_b32 s55, s3, 3")
        A("s_lshl_b32 s55, s55, 14")
        A("s_xor_b32 s26, s70, 4")
        A("s_sub_u32 s26, s26, s70")
        A(f"s_mul_i32 s26, s26, {WQC}")
        A("s_add_u32 s26, s26, s65")
        for lam in range(8): dload(lam, lam * 2048, "s26")
    AR = [192 + 4*k for k in range(16)]
    def aload(lam, slot):
        ft = lam % 7; vo = "v14" if lam < 7 else "v15"
        A(f"s_add_u32 s30, s53, {ft*4096}")
        for nt in range(2):
            A(f"buffer_load_dwordx4 {v(AR[slot+nt],4)}, {vo}, s[48:51], s30 offen offset:{nt*1024} sc1")
    A("s_cmp_lt_u32 s3, 4")
    A("s_cbranch_scc1 KC_p1")
    A("s_cmp_eq_u32 s3, 7")
    A("s_cbranch_scc1 KC_nohw")
    for i in range(HW1, 32): wload(i)
    A.label("KC_nohw")
    if H2B == 2:
        A("s_xor_b32 s24, s25, 0x8000")
        A("s_xor_b32 s44, s45, 0x200")
        poll1("b", "s45")
        h2dma("s25", 65536)
        poll1("c", "s44")
        A("s_xor_b32 s27, s27, 0x8000")
        h2dma("s24", 65536)
    A("s_cmp_eq_u32 s3, 7")
    A("s_cbranch_scc1 KC_w7b")
    for lam in range(8, 8 + HE): dload(lam)
    A(f"s_waitcnt vmcnt({16 + 2*HE})")
    A(f"v_mov_b32 v13, {GOL}")
    A("s_mov_b32 s52, s23")
    A.label("KC_p1")
    A("s_setprio 2")
    A("s_mov_b32 s35, 0")
    A.label("KC_pass")
    BR = [48, 56, 80, 88]
    def brd(ks):
        A(f"ds_read_b128 {v(BR[ks&3],4)}, v7 offset:{ks*2048}")
        A(f"ds_read_b128 {v(BR[ks&3]+4,4)}, v7 offset:{ks*2048+512}")
    for ks in range(3): brd(ks)
    for ks in range(32):
        if ks + 3 < 32: brd(ks + 3)
        if ks < 28: A(f"s_waitcnt lgkmcnt({2*min(3, 31-ks)})")
        elif ks == 28:
            A("s_waitcnt lgkmcnt(0)")
            A("s_cmp_eq_u32 s35, 0")
            A("s_cbranch_scc1 KC_nosr")
            sreq(0)
            A.label("KC_nosr")
        if ks == 10:
            A("s_cmp_lt_u32 s3, 4")
            A("s_cbranch_scc1 KC_nopk")
            A("s_mov_b64 exec, 1")
            A(f"s_waitcnt vmcnt({2*HE})")
            A("s_cmp_eq_u32 s35, 0")
            A("s_cbranch_scc1 KC_pk1")
            A("s_waitcnt vmcnt(0)")
            A.label("KC_pk1")
            A("ds_add_u32 v13, v9")
            A("s_mov_b64 exec, -1")
            A.label("KC_nopk")
        for nt in ((0, 1) if ks & 1 == 0 else (1, 0)):
            c = C + 16*nt
            A(f"v_mfma_f32_32x32x16_bf16 {v(c,16)}, {v(W+4*ks,4)}, {v(BR[ks&3]+4*nt,4)}, {'0' if ks==0 else v(c,16)}")
    A("s_setprio 1")
    A("s_cmp_eq_u32 s35, 0")
    A("s_cbranch_scc0 KC_pe2")
    stamp(A, 10)
    signal(4)
    A("s_branch KC_gelu")
    A.label("KC_pe2")
    stamp(A, 13)
    signal(8)
    A("s_mov_b32 s29, s31")
    A("s_mov_b32 s33, s34")
    A("s_mov_b32 s54, 0")
    A("s_cmp_lt_u32 s3, 4")
    A("s_cbranch_scc1 KC_gelu")
    for lam in range(7, 14 if HWO else 8): dload(lam)
    stest(0, 4)
    A("s_cbranch_scc0 KC_gelu")
    A("s_mov_b32 s54, 1")
    for lam in range(7, 11): aload(lam, 2*(lam - 7))
    A.label("KC_gelu")
    A("s_nop 3")
    for nt in (1, 0):
        g0 = C + 16*nt; u0 = g0 + 8; t0 = GT
        for k in range(8): A(f"v_mul_f32 v{t0+k}, v{g0+k}, v{g0+k}")
        for k in range(8): A(f"v_fma_f32 v{t0+k}, v{t0+k}, s32, v11")
        for k in range(8): A(f"v_mul_f32 v{t0+k}, v{t0+k}, v{g0+k}")
        for k in range(8): A(f"v_exp_f32 v{t0+k}, v{t0+k}")
        for k in range(8): A(f"v_mul_f32 v{u0+k}, v{u0+k}, v{g0+k}")
        for k in range(8): A(f"v_add_f32 v{t0+k}, 1.0, v{t0+k}")
        for k in range(8): A(f"v_rcp_f32 v{t0+k}, v{t0+k}")
        for k in range(8): A(f"v_mul_f32 v{u0+k}, v{u0+k}, v{t0+k}")
        for k in range(4): A(f"v_cvt_pk_bf16_f32 v{g0+k}, v{u0+2*k}, v{u0+2*k+1}")
        A(f"buffer_store_dwordx4 {v(g0,4)}, v5, s[48:51], s29 offen offset:{nt*1024} sc1")
    A("s_cmp_eq_u32 s35, 0")
    A("s_cbranch_scc0 KC_after2")
    stamp(A, 11)
    A("s_mov_b32 s35, 1")
    A("v_add_u32 v7, 0x10000, v7")
    A("s_cmp_lt_u32 s3, 4")
    A("s_cbranch_scc0 KC_mid_hi")
    flag("s33")
    if H2B != 2: signal(0)
    for lam in range(8 + LWE, 14): dload(lam)
    A("s_branch KC_mid_done")
    A.label("KC_mid_hi")
    flag("s33")
    for lam in range(8 + HE, 14): dload(lam)
    park()
    A(f"v_mov_b32 v13, {GOL + 12}")
    A.label("KC_mid_done")
    ldswait("b", 0, 4 if H2B == 2 else 8)
    stamp(A, 12)
    A("s_branch KC_pass")
    C = 128
    def mmq(d0, d1, a0, a1, first=False):
        for t, nt in ((0,0),(0,1),(1,1),(1,0)):
            c = C + 32*t + 16*nt
            A(f"v_mfma_f32_32x32x16_bf16 {v(c,16)}, {v((d0,d1)[t],4)}, {v((a0,a1)[nt],4)}, {'0' if first else v(c,16)}")
    def mm1(lam, slot, first=False): mmq(DR(lam,0), DR(lam,1), AR[slot], AR[slot+1], first)
    def mm(lams, slot0, n_young):
        for ik, lam in enumerate(lams):
            A(f"s_waitcnt vmcnt({2*len(lams) - 2*ik - 2 + n_young})")
            mm1(lam, slot0 + 2*ik)
    A.label("KC_after2")
    stamp(A, 14)
    A("s_cmp_lt_u32 s3, 4")
    A("s_cbranch_scc1 KC_lo2")
    for k in range(64): A(f"v_mov_b32 v{C+k}, 0")
    flag("s33")
    A("s_setprio 0")
    A("s_cmp_eq_u32 s54, 1")
    A("s_cbranch_scc1 KC_b2")
    A("s_branch KC_slow3")
    A.label("KC_w7b")
    A(f"s_setprio {E('W7P', 3)}")
    for lam in range(8, 14): dload(lam)
    A("s_waitcnt vmcnt(12)")
    signal(0)
    dload(7)
    items = [(k, lam) for k in range(4) for lam in range(4)] + [(k, lam) for k in range(4) for lam in range(4, 7)]
    RQ = [16 + 4*q for q in range(12)] + [192 + 4*q for q in range(16)]
    NS = 7
    SQ = lambda i, q: RQ[4*(i % NS) + q]
    DLT = [44, 45, 46, 54]
    for k in range(4):
        A(f"s_add_u32 s{DLT[k]}, s70, {5 + k}")
        A(f"s_and_b32 s{DLT[k]}, s{DLT[k]}, 7")
        A(f"s_sub_u32 s{DLT[k]}, s{DLT[k]}, s70")
    def iw(i):
        k, lam = items[i]
        A(f"s_mul_i32 s71, s{DLT[k]}, {WQC}")
        A("s_add_u32 s71, s71, s65")
        A(f"s_add_u32 s71, s71, {lam*4096}")
        for t in range(2): A(f"buffer_load_dwordx4 {v(SQ(i,t),4)}, v14, s[12:15], s71 offen offset:{t*1024}")
    def ia(i):
        k, lam = items[i]
        A(f"s_mul_i32 s33, s{DLT[k]}, 28672")
        A("s_add_u32 s33, s33, s53")
        A(f"s_add_u32 s33, s33, {lam*4096}")
        for nt in range(2): A(f"buffer_load_dwordx4 {v(SQ(i,2+nt),4)}, v14, s[48:51], s33 offen offset:{nt*1024} sc1")
    def poll4(tag, off, n):
        PR = [36, 40, 24, 28]
        A(f"s_mov_b32 s47, {SPIN}")
        A.label(f"KC_q{tag}")
        for k in range(4):
            A(f"s_lshl_b32 s34, s{DLT[k]}, 7")
            A("s_add_u32 s34, s34, s52")
            A(f"s_add_u32 s34, s34, {off}")
            A(f"s_load_dwordx4 s[{PR[k]}:{PR[k]+3}], s[56:57], s34 glc")
        A("s_waitcnt lgkmcnt(0)")
        for k in range(1, 4):
            A(f"s_and_b64 s[36:37], s[36:37], s[{PR[k]}:{PR[k]+1}]")
            A(f"s_and_b64 s[38:39], s[38:39], s[{PR[k]+2}:{PR[k]+3}]")
        A("s_and_b32 s36, s36, s37")
        A("s_and_b32 s36, s36, s38")
        if n == 4: A("s_and_b32 s36, s36, s39")
        A("s_cmp_eq_u32 s36, 1")
        A(f"s_cbranch_scc1 KC_r{tag}")
        if SL2: A(f"s_sleep {SL2}")
        A("s_sub_u32 s47, s47, 1")
        A(f"s_cbranch_scc0 KC_q{tag}")
        A.label(f"KC_r{tag}")
    order = []
    for i in range(NS): iw(i); order += [("w", i)] * 2
    poll4("0", 0, 4)
    for i in range(NS): ia(i); order += [("a", i)] * 2
    park(); order += [("p", 0)] * 16
    for i in range(28):
        last = max(j for j, o in enumerate(order) if o == ("a", i))
        A(f"s_waitcnt vmcnt({len(order) - 1 - last})")
        if i == NS: signal(12)
        mmq(SQ(i,0), SQ(i,1), SQ(i,2), SQ(i,3), i == 0)
        if i + NS < 28:
            iw(i + NS); order += [("w", i + NS)] * 2
            if i + NS == 16: poll4("1", 16, 3)
            ia(i + NS); order += [("a", i + NS)] * 2
    stamp(A, 15)
    A("s_branch KC_slow3")
    A.label("KC_lo2")
    stest(0, 7)
    A("s_cbranch_scc1 KC_gtg")
    flag("s33")
    spoll("g0", 0, 0, 7)
    for lam in range(7): aload(lam, 2*lam)
    A("s_branch KC_lo3")
    A.label("KC_gtg")
    for lam in range(7): aload(lam, 2*lam)
    A("s_mov_b64 exec, 1")
    A("s_waitcnt vmcnt(14)")
    A("buffer_store_dword v9, v8, s[8:11], s33 offen sc1")
    A("s_mov_b64 exec, -1")
    A.label("KC_lo3")
    A("s_setprio 0")
    if LDL:
        for lam in range(8, 14): dload(lam)
    ldswait("k", 12, 4)
    A("s_lshl_b32 s55, s3, 14")
    A("v_add_u32 v13, s55, v5")
    for lam in range(8):
        for t in range(2): A(f"ds_read_b128 {v(DR(lam,t),4)}, v13 offset:{lam*2048 + t*1024}")
    A(f"s_waitcnt vmcnt({18 if LDL else 6}) lgkmcnt(0)")
    stamp(A, 15)
    sreq(1)
    for lam in range(4): mm1(lam, 2*lam, lam == 0)
    A("s_waitcnt lgkmcnt(0)")
    stest(0, 4)
    A("s_cbranch_scc0 KC_slow2")
    for lam in range(7, 11): aload(lam, 2*(lam - 7))
    A("s_waitcnt vmcnt(8)")
    for lam in range(4, 7): mm1(lam, 2*lam)
    A("s_branch KC_b2")
    A.label("KC_slow2")
    A("s_waitcnt vmcnt(0)")
    for lam in range(4, 7): mm1(lam, 2*lam)
    A.label("KC_slow3")
    spoll("h", 1, 0, 4)
    for lam in range(7, 11): aload(lam, 2*(lam - 7))
    A.label("KC_b2")
    sreq(1)
    A("v_and_b32 v9, 7, v0")
    A("v_lshrrev_b32 v1, 3, v0")
    A("s_lshl_b32 s31, s20, 3")
    A("v_add_u32 v11, s31, v9")
    A("v_lshlrev_b32 v12, 5, v11")
    A(f"s_mov_b32 s32, {MOD_OFF + 5*2048}")
    A("buffer_load_dwordx4 v[24:27], v12, s[8:11], s32 offen")
    A("buffer_load_dwordx4 v[28:31], v12, s[8:11], s32 offen offset:16")
    A("v_sub_u32 v32, 63, v11")
    A("s_cmp_lt_u32 s20, 4")
    A("s_cselect_b64 vcc, -1, 0")
    A("s_cselect_b32 s33, 0, 4")
    A("s_mov_b32 s34, 0x01000c0c")
    A("s_cselect_b32 s34, 0x05040c0c, s34")
    A("s_add_u32 s35, s34, 0x02020000")
    A("v_cndmask_b32 v32, v32, v11, vcc")
    A("v_lshrrev_b32 v33, 2, v32")
    A("v_and_b32 v32, 3, v32")
    A("v_lshl_add_u32 v32, v33, 3, v32")
    A("v_add_u32 v32, s33, v32")
    A("v_lshlrev_b32 v32, 10, v32")
    A("v_lshl_add_u32 v32, v1, 4, v32")
    A("v_sub_u32 v33, 64, v11")
    A("v_and_b32 v33, 31, v33")
    A("v_lshrrev_b32 v34, 2, v33")
    A("v_and_b32 v33, 3, v33")
    A("v_lshl_add_u32 v33, v34, 3, v33")
    A("v_add_u32 v33, 4, v33")
    A("v_lshlrev_b32 v33, 10, v33")
    A("v_lshl_add_u32 v33, v1, 4, v33")
    A("s_lshl_b32 s31, s21, 16")
    A("buffer_load_dwordx4 v[16:19], v32, s[16:19], s31 offen sc1")
    A("buffer_load_ushort v20, v33, s[16:19], s31 offen sc1")
    A("v_and_b32 v32, 31, v1")
    A("v_lshlrev_b32 v32, 6, v32")
    A("v_add_u32 v32, s21, v32")
    A("v_add_u32 v33, 32, v32")
    A("v_sub_u32 v34, 0x800, v32")
    A("s_cmp_eq_u32 s21, 0")
    A("s_cselect_b64 vcc, -1, 0")
    A("v_cndmask_b32 v33, v34, v33, vcc")
    A("s_cmp_lt_u32 s3, 4")
    A("s_cselect_b64 vcc, -1, 0")
    A("v_cndmask_b32 v32, v33, v32, vcc")
    A("v_lshlrev_b32 v32, 10, v32")
    A("v_lshl_add_u32 v11, v11, 4, v32")
    srd(A, 44, 68, 0x200000) if False else None
    A(f"v_mul_u32_u24 v21, {4*RCH}, v4")
    A("v_lshl_add_u32 v21, v3, 4, v21")
    A(f"s_mul_i32 s31, s3, {RSRC}")
    A(f"s_add_u32 s31, s31, {REDL}")
    A("v_add_u32 v21, s31, v21")
    A(f"v_mul_u32_u24 v22, {RCH}, v9")
    A("v_lshl_add_u32 v22, v1, 4, v22")
    A(f"v_add_u32 v22, {REDL}, v22")
    A("s_waitcnt lgkmcnt(0)")
    stest(4, 7)
    A("s_cbranch_scc0 KC_slow4")
    for lam in range(11, 14): aload(lam, 8 + 2*(lam - 11))
    mm(list(range(7, 11)), 0, 10)
    A("s_branch KC_b3")
    A.label("KC_slow4")
    mm(list(range(7, 11)), 0, 4)
    spoll("3", 1, 4, 7)
    for lam in range(11, 14): aload(lam, 8 + 2*(lam - 11))
    A.label("KC_b3")
    XO = 32
    A("s_waitcnt vmcnt(6)")
    for k in range(8):
        mir = "v20" if k == 0 else f"v{16 + ((8-k) >> 1)}"
        A(f"v_perm_b32 v{XO+k}, v{16 + (k >> 1)}, {mir}, {'s34' if k % 2 == 0 else 's35'}")
    srd(A, 60, 68, 0x200000)
    ldswait("d", 8, 7)
    mm(list(range(11, 14)), 8, 0)
    PK = 192
    for nt in (1, 0):
        for jj in range(4):
            p = PK + 16*nt + 4*jj
            for t in range(2):
                c = C + 32*t + 16*nt
                A(f"v_cvt_pk_bf16_f32 v{p+2*t}, v{c+jj}, v{c+4+jj}")
                A(f"v_cvt_pk_bf16_f32 v{p+2*t+1}, v{c+8+jj}, v{c+12+jj}")
            A(f"ds_write_b128 v21, {v(p,4)} offset:{jj*RCH + nt*512}")
    A("s_waitcnt lgkmcnt(0)")
    A("s_barrier")
    stamp(A, 20)
    D = 96; AC = 64
    for i in range(8): A(f"ds_read_b128 {v(D+4*i,4)}, v22 offset:{i*RSRC}")
    for i in range(8):
        A(f"s_waitcnt lgkmcnt({7-i})")
        tb = AC if i == 0 else 72
        for j in range(4):
            A(f"v_lshlrev_b32 v{tb+2*j}, 16, v{D+4*i+j}")
            A(f"v_and_b32 v{tb+2*j+1}, s58, v{D+4*i+j}")
        if i:
            for j in range(4): A(f"v_pk_add_f32 {v(AC+2*j,2)}, {v(AC+2*j,2)}, {v(tb+2*j,2)}")
    for k in range(8): A(f"v_fmac_f32 v{XO+k}, v{24+k}, v{AC+k}")
    for k in range(4): A(f"v_cvt_pk_bf16_f32 v{48+k}, v{XO+2*k}, v{XO+2*k+1}")
    A("buffer_store_dwordx4 v[48:51], v11, s[60:63], 0 offen")
    if STAMPS: A("s_waitcnt vmcnt(0)")
    stamp_flush(A, 0, 22)
    A.label("KC_end")
    A("s_endpgm")
    A.label("KC_code_end")
    return A
```

```python
from gen_common import *
K1_SLAB, K1_GEMV, K1_REL = 64, 96, 96
K1_GRID = K1_SLAB + K1_GEMV + K1_REL
RS = 576
NPF = 0
NT = int(os.environ.get("NT", "7"))
ntf = lambda b: " nt" if NT & b else ""
CPFN = int(os.environ.get("CPFN", "8"))
PST = int(os.environ.get("P0ST", "0"))
N1, N2 = 41 + 64 + 96, 80 + 96
def prefill(A):
    srd(A, 52, 4, LOW_BYTES)
    A("v_and_b32 v1, 63, v0")
    A("v_lshlrev_b32 v1, 4, v1")
    A("s_lshl_b32 s21, s36, 13")
    A(f"s_add_u32 s22, s21, {STS_OFF}")
    A(f"s_add_u32 s23, s21, {FLAG_OFF - 32*8192}")
    A("s_cmp_lt_u32 s36, 32")
    A("s_cselect_b32 s22, s22, s23")
    A("s_cselect_b32 s24, -1, 0")
    A("s_add_u32 s23, s22, 4096")
    for k in range(4): A(f"v_mov_b32 v{8+k}, s24")
    for z in range(8): A(f"buffer_store_dwordx4 v[8:11], v1, s[52:55], {'s22' if z < 4 else 's23'} offen offset:{(z&3)*1024} sc1")
    A("s_waitcnt vmcnt(0)")
def arrive(A, off, tag):
    A("s_mov_b32 s58, 1")
    A("s_atomic_add s58, s[66:67], 0 glc")
    A("s_waitcnt lgkmcnt(0)")
    A(f"s_cmp_eq_u32 s58, {N1 - 1}")
    A(f"s_cbranch_scc0 K1_na{tag}")
    A("s_mov_b32 s58, 1")
    A("s_atomic_add s58, s[66:67], 128")
    A.label(f"K1_na{tag}")
def early(A, tag):
    pass
def phase0(A):
    code_prefetch = None
    A("s_load_dwordx2 s[4:5], s[0:1], 104")
    A("s_load_dwordx2 s[66:67], s[0:1], 96")
    if int(os.environ.get("CPF", "1")):
        A("s_getpc_b64 s[26:27]")
        A.label("K1_pc")
        A("v_lshlrev_b32 v1, 6, v0")
        A(f"s_cmp_lt_u32 s2, {CPFN}")
        A("s_cbranch_scc0 K1_pfskip")
        A("v_cmp_gt_u32 vcc, KC_code_end-K1_pc-4, v1")
        A("s_and_saveexec_b64 s[28:29], vcc")
        A("s_cbranch_execz K1_pfr")
        A("global_load_dword v127, v1, s[26:27]")
        A.label("K1_pfr")
        A("s_mov_b64 exec, -1")
        A.label("K1_pfskip")
    A("v_lshrrev_b32 v1, 6, v0")
    A("v_readfirstlane_b32 s65, v1")
    A(f"s_cmp_ge_u32 s2, {K1_SLAB + K1_GEMV}")
    A("s_cbranch_scc1 K1_rel")
    A(f"s_cmp_ge_u32 s2, {K1_SLAB}")
    A("s_cbranch_scc1 K1_gemv")
    A("s_load_dwordx2 s[6:7], s[0:1], 0")
    A("s_and_b32 s16, s2, 31")
    A("s_lshr_b32 s17, s2, 5")
    A("s_lshl_b32 s18, s17, 9")
    A("s_xor_b32 s20, s18, 512")
    A("s_lshl_b32 s21, s17, 5")
    A("v_lshrrev_b32 v1, 3, v0")
    A("v_xor_b32 v1, s21, v1")
    A("v_and_b32 v2, 7, v0")
    A("v_lshlrev_b32 v2, 4, v2")
    A("v_lshl_add_u32 v3, v1, 15, v2")
    A("s_lshl_b32 s19, s16, 10")
    A("v_add_u32 v3, s19, v3")
    A("s_waitcnt lgkmcnt(0)")
    srd(A, 8, 6, 0x200000)
    D = 32
    for i in range(8):
        A(f"buffer_load_dwordx4 {v(D+4*i,4)}, v3, s[8:11], {'s18' if i < 4 else 's20'} offen offset:{(i&3)*128}{ntf(1)}")
    if PST: stamp(A, 9)
    srd(A, 12, 4, 0x200000, SLAB_OFF)
    A(f"v_mul_u32_u24 v4, {RS}, v1")
    A("v_add_u32 v4, v4, v2")
    A("v_and_b32 v5, 63, v0")
    A("v_lshrrev_b32 v6, 6, v0")
    A("v_and_b32 v7, 31, v5")
    A("v_lshrrev_b32 v8, 5, v5")
    A("v_and_b32 v9, 3, v6")
    A("v_lshrrev_b32 v10, 2, v6")
    A("v_cmp_eq_u32 vcc, 0, v7")
    A("v_cndmask_b32 v11, v7, 32, vcc")
    A(f"v_mov_b32 v12, {fl(0.25)}")
    A("v_cndmask_b32 v12, v12, 0, vcc")
    A("v_cmp_eq_u32 vcc, 0, v10")
    A("v_cndmask_b32 v11, v11, v7, vcc")
    A("v_cndmask_b32 v12, v12, 0, vcc")
    A("v_cvt_f32_u32 v11, v11")
    A(f"v_mul_f32 v11, {fl(1/64)}, v11")
    A("v_lshlrev_b32 v13, 3, v8")
    A("v_cvt_f32_u32 v13, v13")
    A("v_fma_f32 v12, v11, v13, v12")
    F = 64; T = 80
    for ks in range(4):
        for j in range(8): A(f"v_fmamk_f32 v{T+j}, v11, {fl(float(16*ks+j))}, v12")
        for j in range(8): A(f"v_cos_f32 v{T+j}, v{T+j}")
        for j in range(4): A(f"v_cvt_pk_f16_f32 v{F+4*ks+j}, v{T+2*j}, v{T+2*j+1}")
    A("v_and_b32 v14, 15, v5")
    A("v_lshrrev_b32 v15, 2, v14")
    A("v_lshl_add_u32 v15, v8, 3, v15")
    A(f"v_mul_u32_u24 v15, {RS}, v15")
    A("v_bfe_u32 v16, v5, 4, 1")
    A("v_lshlrev_b32 v16, 2, v16")
    A("v_and_b32 v17, 1, v14")
    A("v_lshl_or_b32 v16, v17, 1, v16")
    A("v_bfe_u32 v17, v14, 1, 1")
    A("v_or_b32 v16, v16, v17")
    A("v_lshlrev_b32 v16, 3, v16")
    A("v_lshl_add_u32 v16, v9, 7, v16")
    A("v_add_u32 v15, v15, v16")
    A("v_lshl_add_u32 v18, v7, 1, v10")
    A("v_lshlrev_b32 v18, 15, v18")
    A("v_lshl_add_u32 v18, v9, 7, v18")
    A("v_lshl_add_u32 v18, v8, 4, v18")
    A("s_add_u32 s18, s18, s19")
    A("v_mov_b32 v20, 0\nv_mov_b32 v21, 0\nv_mov_b32 v22, 0\nv_mov_b32 v23, 0")
    A("s_mov_b32 s30, 0x3f803f80")
    for i in range(8):
        A(f"s_waitcnt vmcnt({7-i+NPF})")
        for j in range(4):
            r = D + 4*i + j
            A(f"v_dot2c_f32_bf16 v{20+(j&1)}, s30, v{r}")
            A(f"v_dot2c_f32_bf16 v{22+(j&1)}, v{r}, v{r}")
    if PST: stamp(A, 10)
    A("v_add_f32 v20, v20, v21")
    A("v_add_f32 v22, v22, v23")
    for m in ("quad_perm:[1,0,3,2]", "quad_perm:[2,3,0,1]", "row_half_mirror"):
        A(f"v_add_f32_dpp v20, v20, v20 {m} row_mask:0xf bank_mask:0xf")
        A(f"v_add_f32_dpp v22, v22, v22 {m} row_mask:0xf bank_mask:0xf")
    A(f"v_mul_f32 v20, {fl(1/512)}, v20")
    A(f"v_mul_f32 v22, {fl(1/512)}, v22")
    A("v_fma_f32 v22, -v20, v20, v22")
    A("v_max_f32 v22, 0, v22")
    A(f"v_add_f32 v22, {fl(1e-5)}, v22")
    A("v_rsq_f32 v22, v22")
    A("v_mul_f32 v20, v20, v22")
    A("v_mov_b32 v23, v22")
    A("v_sub_f32 v20, 0, v20")
    A("v_mov_b32 v21, v20")
    A("s_mov_b32 s31, 0xffff0000")
    for i in range(4):
        for j in range(4):
            r = D + 4*i + j
            t = 24 + 2*(j & 1)
            A(f"v_lshlrev_b32 v{t}, 16, v{r}")
            A(f"v_and_b32 v{t+1}, s31, v{r}")
            A(f"v_pk_fma_f32 {v(t,2)}, {v(t,2)}, v[22:23], v[20:21]")
            A(f"v_cvt_pk_f16_f32 v{r}, v{t}, v{t+1}")
        A(f"ds_write_b128 v4, {v(D+4*i,4)} offset:{128*i}")
    A("s_waitcnt lgkmcnt(0)")
    A("s_barrier")
    if PST: stamp(A, 11)
    Af = 32
    for t in range(2):
        for ks in range(4):
            for q in range(2):
                A(f"ds_read_b64_tr_b16 {v(Af+16*t+4*ks+2*q,2)}, v15 offset:{(16*ks+4*q)*RS + 64*t}")
    C = 96
    for t in range(2):
        for ks in range(4):
            A(f"s_waitcnt lgkmcnt({14-8*t-2*ks})")
            A(f"v_mfma_f32_32x32x16_f16 {v(C+16*t,16)}, {v(Af+16*t+4*ks,4)}, {v(F+4*ks,4)}, {'0' if ks==0 else v(C+16*t,16)}")
    A("v_mul_u32_u24 v19, 144, v7")
    A("v_lshl_add_u32 v19, v8, 4, v19")
    A(f"v_mul_u32_u24 v20, {32*144}, v6")
    A(f"v_add_u32 v20, {64*RS}, v20")
    A("v_add_u32 v19, v19, v20")
    A("v_lshrrev_b32 v21, 3, v5")
    A("v_mul_u32_u24 v22, 144, v21")
    A("v_add3_u32 v22, v22, v20, v2")
    A("v_lshl_add_u32 v18, v21, 1, v10")
    A("v_lshlrev_b32 v18, 15, v18")
    A("v_lshl_add_u32 v18, v9, 7, v18")
    A("v_add_u32 v18, v18, v2")
    for t in range(2):
        for j in range(8):
            A(f"v_cvt_pk_f16_f32 v{80+8*t+j}, v{C+16*t+2*j}, v{C+16*t+2*j+1}")
        A(f"ds_write_b128 v19, {v(80+8*t,4)} offset:{64*t}")
        A(f"ds_write_b128 v19, {v(84+8*t,4)} offset:{64*t+32}")
    for i in range(4): A(f"ds_read_b128 {v(32+4*i,4)}, v22 offset:{i*8*144}")
    for i in range(4):
        A(f"s_waitcnt lgkmcnt({3-i})")
        A(f"buffer_store_dwordx4 {v(32+4*i,4)}, v18, s[12:15], s18 offen sc1")
        if i < 3: A("s_add_u32 s18, s18, 0x80000")
    A("s_mov_b32 s64, 0")
    A("s_branch K1_arrive")
    A.label("K1_gemv")
    A(f"s_sub_u32 s3, s2, {K1_SLAB}")
    A.label("K1_gv0")
    A("s_load_dwordx4 s[16:19], s[0:1], 72")
    A("s_and_b32 s24, s3, 7")
    A("s_lshl_b32 s24, s24, 1")
    A("s_bfe_u32 s25, s3, 0x10003")
    A("s_add_u32 s24, s24, s25")
    A("s_andn2_b32 s3, s3, 15")
    A("s_add_u32 s3, s3, s24")
    A("v_lshrrev_b32 v1, 2, v0")
    A("v_and_b32 v2, 3, v0")
    A(f"v_mul_u32_u24 v3, {8*6144}, v1")
    A("v_lshl_add_u32 v3, v2, 4, v3")
    A("s_lshl_b32 s40, s3, 6")
    for i in range(1, 8): A(f"s_add_u32 s{40+i}, s{39+i}, 6144")
    A("v_lshlrev_b32 v4, 4, v1")
    A("s_waitcnt lgkmcnt(0)")
    srd(A, 8, 18, 512*3072*2)
    srd(A, 12, 16, 1024)
    D = 32
    A("s_cmp_lt_u32 s65, 4")
    A("s_cbranch_scc0 K1_gvnl")
    A("buffer_load_dwordx4 v[12:15], v4, s[12:15], 0 offen")
    for i in range(8): A(f"buffer_load_dwordx4 {v(D+4*i,4)}, v3, s[8:11], s{40+i} offen{ntf(2)}")
    A.label("K1_gvnl")
    if PST: stamp(A, 9)
    srd(A, 12, 4, LOW_BYTES)
    A("v_and_b32 v6, 63, v0")
    A("v_lshrrev_b32 v5, 4, v0")
    A("v_lshlrev_b32 v5, 7, v5")
    A("v_lshl_add_u32 v5, v2, 5, v5")
    A("v_and_b32 v7, 31, v0")
    A("v_bfe_u32 v8, v0, 5, 1")
    A("v_lshlrev_b32 v8, 10, v8")
    A("v_lshl_add_u32 v8, v7, 2, v8")
    for j in range(8): A(f"v_mov_b32 v{64+j}, 0")
    A("s_cmp_lt_u32 s3, 16")
    A("s_cbranch_scc0 K1_nocos")
    A("v_lshrrev_b32 v9, 6, v0")
    A("v_lshl_add_u32 v9, v9, 5, v7")
    A("v_cmp_eq_u32 vcc, 32, v0")
    A("v_mov_b32 v10, 0x100")
    A("v_cndmask_b32 v9, v9, v10, vcc")
    A("v_cvt_f32_u32 v9, v9")
    A(f"v_mul_f32 v9, {fl(1/512)}, v9")
    A("s_lshl_b32 s24, s3, 5")
    A("v_cvt_f32_u32 v10, s24")
    A("v_mul_f32 v10, v9, v10")
    for k in range(32): A(f"v_fmamk_f32 v{80+k}, v9, {fl(float(k))}, v10")
    for k in range(32): A(f"v_cos_f32 v{80+k}, v{80+k}")
    A.label("K1_nocos")
    A("s_cmp_lt_u32 s65, 4")
    A("s_cbranch_scc0 K1_gvb")
    A("s_waitcnt vmcnt(8)")
    for i in range(8):
        A(f"v_lshlrev_b32 v{16+i}, 16, v{12+(i>>1)}" if i % 2 == 0 else f"v_and_b32 v{16+i}, 0xffff0000, v{12+(i>>1)}")
        A(f"v_mul_f32 v{24+i}, {fl(-1.4426950408889634)}, v{16+i}")
    for i in range(8): A(f"v_exp_f32 v{24+i}, v{24+i}")
    for i in range(8): A(f"v_add_f32 v{24+i}, 1.0, v{24+i}")
    for i in range(8): A(f"v_rcp_f32 v{24+i}, v{24+i}")
    for i in range(8): A(f"v_mul_f32 v{16+i}, v{16+i}, v{24+i}")
    for i in range(8): A(f"v_cvt_pk_bf16_f32 v{16+i}, v{16+i}, 0")
    for i in range(8): A(f"v_lshlrev_b32 v{24+i}, 16, v{16+i}")
    for i in range(8):
        A(f"s_waitcnt vmcnt({7-i})")
        for j in range(4):
            A(f"v_dot2c_f32_bf16 v{64+2*j}, v{16+i}, v{D+4*i+j}")
            A(f"v_dot2c_f32_bf16 v{65+2*j}, v{24+i}, v{D+4*i+j}")
    if PST: stamp(A, 10)
    for m in ("row_ror:4", "row_ror:8"):
        for j in range(8): A(f"v_add_f32_dpp v{64+j}, v{64+j}, v{64+j} {m} row_mask:0xf bank_mask:0xf")
    A("s_mov_b32 exec_lo, 0x000f000f")
    A("s_mov_b32 exec_hi, 0x000f000f")
    A("ds_write_b128 v5, v[64:67]")
    A("ds_write_b128 v5, v[68:71] offset:16")
    A("s_mov_b64 exec, -1")
    A("s_waitcnt lgkmcnt(0)")
    A.label("K1_gvb")
    A("s_barrier")
    A("v_cmp_gt_u32 vcc, 64, v0")
    A("s_and_saveexec_b64 s[30:31], vcc")
    A("s_cbranch_execz K1_gv2")
    for i in range(8): A(f"ds_read_b32 v{16+i}, v8 offset:{128*i}")
    A("s_lshr_b32 s28, s3, 4")
    A("s_and_b32 s29, s3, 15")
    A("s_lshl_b32 s29, s29, 5")
    A("v_add_u32 v10, s29, v7")
    A("v_sub_u32 v11, 0x200, v10")
    A("v_and_b32 v11, 0xff, v11")
    A("v_cmp_gt_u32 vcc, 0x100, v10")
    A("v_cndmask_b32 v12, v11, v10, vcc")
    A("v_cndmask_b32 v13, 32, 0, vcc")
    A("v_lshrrev_b32 v14, 5, v12")
    A("v_and_b32 v12, 31, v12")
    A("v_lshl_add_u32 v12, v14, 6, v12")
    A("v_add_u32 v12, v12, v13")
    A("s_sub_u32 s32, s28, 2")
    A("s_cmp_lt_u32 s32, 3")
    A("s_cselect_b64 vcc, -1, 0")
    A("v_cndmask_b32 v10, v10, v12, vcc")
    A("v_lshlrev_b32 v10, 2, v10")
    A("s_lshl_b32 s33, s28, 11")
    A(f"s_add_u32 s33, s33, {MOD_OFF}")
    A("s_cmp_eq_u32 s28, 1")
    A("s_cselect_b32 s34, 1.0, 0")
    A(f"s_cselect_b32 s35, {fl(1/256)}, 1.0")
    A("s_cmp_eq_u32 s28, 4")
    A("s_cselect_b32 s34, 1.0, s34")
    A("s_cmp_eq_u32 s28, 2")
    A(f"s_cselect_b32 s35, {fl(256.0)}, s35")
    A("s_waitcnt lgkmcnt(0)")
    for st in (4, 2, 1):
        for i in range(st): A(f"v_add_f32 v{16+i}, v{16+i}, v{16+st+i}")
    A("v_mov_b32 v17, v16")
    A("v_permlane32_swap_b32 v16, v17")
    A("v_add_f32 v16, v16, v17")
    A("v_cvt_pk_bf16_f32 v16, v16, 0")
    A("v_lshlrev_b32 v16, 16, v16")
    A("v_add_f32 v16, s34, v16")
    A("v_cvt_pk_bf16_f32 v16, v16, 0")
    A("v_lshlrev_b32 v16, 16, v16")
    A("v_mul_f32 v16, s35, v16")
    A("s_mov_b32 exec_hi, 0")
    A("buffer_store_dword v16, v10, s[12:15], s33 offen sc1")
    A("ds_write_b32 v8, v16 offset:4096")
    A("s_waitcnt lgkmcnt(0)")
    A.label("K1_gv2")
    A("s_mov_b64 exec, -1")
    A("s_cmp_lt_u32 s3, 16")
    A("s_cbranch_scc0 K1_gv3")
    A("s_barrier")
    A("v_mov_b32 v9, 0")
    for k in range(8): A(f"ds_read_b128 {v(16+4*k,4)}, v9 offset:{4096+16*k}")
    A("v_lshlrev_b32 v10, 2, v0")
    A("s_lshl_b32 s24, s3, 11")
    A(f"s_add_u32 s24, s24, {SHP_OFF}")
    A("s_waitcnt lgkmcnt(0)")
    A("v_mul_f32 v12, v16, v80")
    A("v_mul_f32 v13, v17, v81")
    for k in range(2, 32): A(f"v_fmac_f32 v{12+(k&1)}, v{16+k}, v{80+k}")
    A("v_add_f32 v12, v12, v13")
    A("buffer_store_dword v12, v10, s[12:15], s24 offen sc1")
    A("s_branch K1_arrive")
    A.label("K1_gv3")
    A("s_waitcnt vmcnt(0)")
    A("s_branch K1_arr2")
    A.label("K1_rel")
    A(f"s_sub_u32 s36, s2, {K1_SLAB + K1_GEMV}")
    A("s_waitcnt lgkmcnt(0)")
    A("s_cmp_eq_u32 s65, 0")
    A("s_cbranch_scc0 K1_done")
    A("s_cmp_lt_u32 s36, 41")
    A("s_cbranch_scc0 K1_done")
    prefill(A)
    A("s_branch K1_arr3")
    A.label("K1_arrive")
    if PST: stamp(A, 12)
    A("s_waitcnt vmcnt(0)")
    if PST: stamp(A, 13)
    A("s_barrier")
    A.label("K1_arr2")
    A("s_cmp_eq_u32 s65, 0")
    A("s_cbranch_scc0 K1_done")
    A.label("K1_arr3")
    arrive(A, "s64", "z")
    A.label("K1_done")
    A("s_mov_b64 exec, -1")

def sidejob(A):
    D = 192; O = 224; AD = 144
    A(f"s_cmp_lt_u32 s2, {K1_SLAB + K1_GEMV}")
    A("s_cbranch_scc1 SJ_end")
    A("s_cmp_eq_u32 s3, 0")
    A("s_cbranch_scc1 SJ_end")
    A("s_mul_i32 s52, s3, 96")
    A("s_add_u32 s52, s52, s2")
    A(f"s_sub_u32 s52, s52, {96 + K1_SLAB + K1_GEMV}")
    if int(os.environ.get("DLY", "0")): A(f"s_sleep {os.environ['DLY']}")
    A.label("SJ_go")
    A("s_load_dwordx4 s[16:19], s[0:1], 48")
    A("s_load_dwordx2 s[14:15], s[0:1], 64")
    A("s_cmp_ge_u32 s52, 448")
    A("s_cbranch_scc1 SJ_d")
    A("v_mov_b32 v130, v5")
    A("s_lshr_b32 s44, s52, 5")
    A("s_and_b32 s45, s52, 31")
    A("s_lshr_b32 s46, s45, 2")
    A("s_lshl_b32 s46, s46, 5")
    A("s_and_b32 s47, s45, 1")
    A("s_lshl_b32 s47, s47, 4")
    A("s_add_u32 s46, s46, s47")
    A("v_lshl_add_u32 v131, v4, 3, s46")
    A("s_bitcmp1_b32 s45, 1")
    A("s_cbranch_scc1 SJ_mir")
    for r in range(8): A(f"s_mov_b32 s{28+r}, {r*3584}")
    A("v_mov_b32 v132, v131")
    A("s_branch SJ_gu2")
    A.label("SJ_mir")
    for r in range(8): A(f"s_mov_b32 s{28+r}, {(7-r)*3584}")
    A("v_sub_u32 v131, 505, v131")
    A("v_cmp_eq_u32 vcc, 505, v131")
    A("v_mov_b32 v132, 249")
    A("v_cndmask_b32 v132, v131, v132, vcc")
    A.label("SJ_gu2")
    A("v_mul_u32_u24 v131, 3584, v131")
    A("v_mul_u32_u24 v132, 3584, v132")
    A("s_lshl_b32 s46, s44, 8")
    A("v_and_b32 v133, 15, v3")
    A("v_lshl_add_u32 v133, v133, 4, s46")
    A("v_add_u32 v131, v131, v133")
    A("v_add_u32 v132, v132, v133")
    A("s_and_b32 s46, s44, 1")
    A(f"s_mul_i32 s46, s46, {WQC}")
    A("s_lshr_b32 s47, s44, 1")
    A("s_lshl_b32 s47, s47, 15")
    A("s_add_u32 s46, s46, s47")
    A("s_lshl_b32 s47, s45, 10")
    A("s_add_u32 s54, s46, s47")
    for q in range(1, 8): A(f"s_add_u32 s{54+q}, s{53+q}, {2*WQC}")
    A("s_waitcnt lgkmcnt(0)")
    A("v_cmp_gt_u32 vcc, 16, v3")
    A("v_mov_b32 v134, s18")
    A("v_mov_b32 v135, s16")
    A("v_cndmask_b32 v134, v134, v135, vcc")
    A("v_mov_b32 v135, s19")
    A("v_mov_b32 v136, s17")
    A("v_cndmask_b32 v135, v135, v136, vcc")
    A("s_branch SJ_ld")
    A.label("SJ_d")
    A("s_sub_u32 s52, s52, 448")
    A("s_and_b32 s44, s52, 7")
    A("s_lshr_b32 s45, s52, 4")
    A("s_bfe_u32 s46, s52, 0x10003")
    A("s_lshl_b32 s47, s45, 7")
    A("s_add_u32 s47, s47, s44")
    A("v_lshl_add_u32 v131, v4, 5, s47")
    A("v_lshlrev_b32 v131, 10, v131")
    A("s_lshl_b32 s47, s46, 9")
    A("v_lshl_add_u32 v133, v3, 4, s47")
    A("v_add_u32 v131, v131, v133")
    A("v_mov_b32 v132, v131")
    A("v_lshrrev_b32 v130, 3, v3")
    A("v_mul_u32_u24 v130, 28672, v130")
    A("v_lshl_add_u32 v130, v4, 9, v130")
    A("v_and_b32 v133, 7, v3")
    A("v_lshl_add_u32 v130, v133, 4, v130")
    for r in range(8): A(f"s_mov_b32 s{28+r}, {(64*(r>>2) + 8*(r&3))*1024}")
    A(f"s_mul_i32 s44, s44, {WQC}")
    A(f"s_mul_i32 s46, s46, {4*28672}")
    A("s_add_u32 s44, s44, s46")
    A("s_lshl_b32 s45, s45, 11")
    A("s_add_u32 s44, s44, s45")
    for q in range(8): A(f"s_add_u32 s{54+q}, s44, {WQD + (q>>2)*1024 + (q&3)*128}")
    A("s_waitcnt lgkmcnt(0)")
    A("v_mov_b32 v134, s14")
    A("v_mov_b32 v135, s15")
    A.label("SJ_ld")
    for r in range(8):
        A(f"v_add_u32 v133, s{28+r}, {'v132' if r == 0 else 'v131'}")
        A(f"v_add_co_u32 v{AD+2*r}, vcc, v134, v133")
        A(f"v_addc_co_u32 v{AD+1+2*r}, vcc, 0, v135, vcc")
        A(f"global_load_dwordx4 {v(D+4*r,4)}, {v(AD+2*r,2)}, off{ntf(4)}")
    srd(A, 12, 4, WQ_BYTES, WQ_OFF)
    A("s_mov_b32 s48, 0x05040100")
    A("s_mov_b32 s49, 0x07060302")
    for rp in range(4):
        A(f"s_waitcnt vmcnt({6-2*rp})")
        for c in range(4):
            A(f"v_perm_b32 v{O+8*c+rp}, v{D+8*rp+4+c}, v{D+8*rp+c}, s48")
            A(f"v_perm_b32 v{O+8*c+4+rp}, v{D+8*rp+4+c}, v{D+8*rp+c}, s49")
    for q in range(8):
        A(f"buffer_store_dwordx4 {v(O+4*q,4)}, v130, s[12:15], s{54+q} offen sc1")
    A.label("SJ_end")
```
